```python
import torch

def _softmax(x, axis=-1):
    return torch.softmax(x, dim=axis)

def _gelu(x):
    return torch.nn.functional.gelu(x, approximate='tanh')

def _silu(x):
    return torch.nn.functional.silu(x)

def _sigmoid(x):
    return torch.sigmoid(x)

def _layernorm(x, axis=-1, eps=1e-05):
    m = x.mean(dim=axis, keepdim=True)
    v = x.var(dim=axis, keepdim=True, unbiased=False)
    return (x - m) / torch.sqrt(v + eps)

def _scatter_add(tgt, idx, src, axis=0):
    return tgt.clone().index_add_(axis, idx, src)

def _segment_sum(src, seg, n):
    out = torch.zeros((n,) + src.shape[1:], dtype=src.dtype)
    return out.index_add_(0, seg, src)

def _pad(x, pw):
    flat = tuple((v for pair in reversed(pw) for v in pair))
    return torch.nn.functional.pad(x, flat)
kernel_name = 'gated_mix__softmax_full_mha__memory_aug_recurrent_mem_tr__prompt'

def setup_inputs():

    _w = lambda a: (lambda t: t.to(torch.bfloat16) if t.is_floating_point() else t)(torch.as_tensor(a))

    def _A_setup():
        B, S, D = (1, 2048, 640)
        return {'x': _w((lambda *s: torch.randn(*s, dtype=torch.bfloat16) * 0.05)(B, S, D)), 'wqkv': _w((lambda *s: torch.randn(*s, dtype=torch.bfloat16) * 0.8)(D, 3 * D)), 'wo': _w((lambda *s: torch.randn(*s, dtype=torch.bfloat16) * 0.05)(D, D))}
    _A_in = _A_setup()

    def _B_setup():
        B, S, Dm = (1, 2048, 640)
        H, Dh = (32, 192)
        M, seg = (8, 32)
        seg = min(seg, S)
        S = S // seg * seg
        return {'x': _w((lambda *s: torch.randn(*s, dtype=torch.bfloat16) * 0.05)(B, S, Dm)), 'mem0': _w((lambda *s: torch.randn(*s, dtype=torch.bfloat16) * 0.8)(B, M, Dm)), 'Wq': _w((lambda *s: torch.randn(*s, dtype=torch.bfloat16) * 3.2)(Dm, H, Dh) * Dm ** (-0.5)), 'Wk': _w((lambda *s: torch.randn(*s, dtype=torch.bfloat16) * 3.2)(Dm, H, Dh) * Dm ** (-0.5)), 'Wv': _w((lambda *s: torch.randn(*s, dtype=torch.bfloat16) * 0.8)(Dm, H, Dh) * Dm ** (-0.5)), 'Wo': _w((lambda *s: torch.randn(*s, dtype=torch.bfloat16) * 0.8)(H, Dh, Dm) * (H * Dh) ** (-0.5)), 'seg_len': seg}
    _B_in = _B_setup()
    return {'A_x': _A_in['x'], 'A_wqkv': _A_in['wqkv'], 'A_wo': _A_in['wo'], 'B_x': _B_in['x'], 'B_mem0': _B_in['mem0'], 'B_Wq': _B_in['Wq'], 'B_Wk': _B_in['Wk'], 'B_Wv': _B_in['Wv'], 'B_Wo': _B_in['Wo'], 'B_seg_len': _B_in['seg_len'], 'gate_w': _w((lambda *s: torch.randn(*s, dtype=torch.bfloat16) * 0.05)(640) * 16.0)}

def reference(A_x, A_wqkv, A_wo, B_x, B_mem0, B_Wq, B_Wk, B_Wv, B_Wo, B_seg_len, gate_w):

    def _A_ref(x, wqkv, wo):
        B, S, D = x.shape
        H = 32
        Dh = D // H
        qkv = (lambda x, *d: x.permute(*d))((x @ wqkv).reshape(B, S, 3, H, Dh), 2, 0, 3, 1, 4)
        q, k, v = (qkv[0], qkv[1], qkv[2])
        scale = Dh ** (-0.5)
        scores = torch.einsum('bhqd,bhkd->bhqk', q, k) * scale
        p = _softmax(scores, axis=-1)
        o = torch.einsum('bhqk,bhkd->bhqd', p, v)
        return (lambda x, *d: x.permute(*d))(o, 0, 2, 1, 3).reshape(B, S, D) @ wo

    def _B_ref(x, mem0, Wq, Wk, Wv, Wo, seg_len):
        B, S, Dm = x.shape
        H, Dh = (Wq.shape[1], Wq.shape[2])
        M = mem0.shape[1]
        scale = Dh ** (-0.5)
        n_seg = S // seg_len
        L = M + seg_len
        idx = torch.arange(L)
        mask = (idx[:, None] < M) | (idx[:, None] >= idx[None, :])
        mem = mem0
        outs = []
        for s in range(n_seg):
            xs = x[:, s * seg_len:(s + 1) * seg_len, :].clone()
            h = torch.concatenate([mem, xs], axis=1)
            q = torch.einsum('btd,dhe->bhte', h, Wq)
            k = torch.einsum('btd,dhe->bhte', h, Wk)
            v = torch.einsum('btd,dhe->bhte', h, Wv)
            scores = torch.einsum('bhqe,bhke->bhqk', q, k) * scale
            scores = torch.where(mask[None, None], scores, -1000000000.0)
            p = _softmax(scores, axis=-1)
            o = torch.einsum('bhqk,bhke->bhqe', p, v)
            o = torch.einsum('bhte,hed->btd', o, Wo)
            mem = o[:, :M, :].clone()
            outs.append(o[:, M:, :])
        return torch.concatenate(outs, axis=1)
    x = A_x
    g = _sigmoid((x * gate_w).sum(-1, keepdims=True))
    a = _A_ref(x, A_wqkv, A_wo)
    b = _B_ref(x, B_mem0, B_Wq, B_Wk, B_Wv, B_Wo, B_seg_len)
    return g * a + (1 - g) * b
```

```python
NAME="gated_mix__softmax_full_mha__memory_aug_recurrent_mem_tr__prompt"
out=[]
def E(s): out.append(s)
def L(s): out.append(s+":")
def vr(b,n=1,k='v'): return f"{k}{b}" if n==1 else f"{k}[{b}:{b+n-1}]"
def ar(b,n=1): return vr(b,n,'a')
def sr(b,n=1): return vr(b,n,'s')
def nop(n):
    while n>0:
        k=min(n,16); E(f"s_nop {k-1}"); n-=k
Z_OFF=0;                 Z_S=80*20480
BW_OFF=Z_OFF+64*Z_S
KX_OFF=BW_OFF+4*80*81920
QX_OFF=KX_OFF+64*32*12288
SX_OFF=QX_OFF+64*32*12288
PX_OFF=SX_OFF+64*32*4096
AQ_OFF=PX_OFF+64*32*2560
AQ_SZ=32*64*2048
AO_OFF=AQ_OFF+3*AQ_SZ
AA_OFF=AO_OFF+2048*1280
XF_OFF=AA_OFF+64*20*2048
G_OFF=XF_OFF+2048*1280
RT0=14
M_OFF=G_OFF+8192
PM_OFF=M_OFF+65*40960
XB_OFF=PM_OFF+64*20480
ID_OFF=XB_OFF+4*327680
SENT_BEG=M_OFF+40960; SENT_END=ID_OFF+4096
FL_OFF=SENT_END
WS_END=FL_OFF+32768
def FLG(i): return FL_OFF+128*i
F_B=0; F_A=4; F_AT=12; F_AO=16; F_QK=32; F_VO=96; F_PR=160; F_END=161; F_FB=168
assert WS_END<=1<<28
WS,X,WQKV,AWO,WQ,WK,WV,WO,OUT,MEM0,GW=[8+4*i for i in range(11)]
def S(b): return sr(b,4)
sW=56; sT=57; sL=58; sB=59; sB2=60; sA=61; sH=62; sR=63; sTask=64; sPh=65; sC=66; sD=67; sE=68; sF=69
BIG=0x40000000
class VM:
    def __init__(s): s.q=[]
    def op(s,tag): s.q.append(tag)
    def wait(s,tag):
        idx=[i for i,t in enumerate(s.q) if t==tag]
        if not idx: return
        n=len(s.q)-1-idx[-1]
        E(f"s_waitcnt vmcnt({min(n,63)})"); s.q=s.q[idx[-1]+1:]
    def all(s): E("s_waitcnt vmcnt(0)"); s.q=[]
def entry():
    E("s_load_dwordx16 s[72:87], s[0:1], 0")
    E("s_load_dwordx8 s[88:95], s[0:1], 64")
    E("s_load_dwordx4 s[96:99], s[0:1], 96")
    E("v_lshrrev_b32 v1, 6, v0"); E("v_and_b32 v255, 63, v0"); E("s_nop 0"); E(f"v_readfirstlane_b32 s{sW}, v1")
    E("s_waitcnt lgkmcnt(0)")
    for srd,p,n in [(WS,98,1<<28),(X,72,2621440),(WQKV,74,2457600),(AWO,76,819200),(WQ,82,7864320),(WK,84,7864320),
                    (WV,86,7864320),(WO,88,7864320),(OUT,94,2621440),(MEM0,80,10240),(GW,92,1280)]:
        E(f"s_mov_b32 s{srd}, s{p}"); E(f"s_and_b32 s{srd+1}, s{p+1}, 0xffff"); E(f"s_mov_b32 s{srd+2}, {n}"); E(f"s_mov_b32 s{srd+3}, 0x20000")
def lanefield(dst,shift,mask,mul,add=None):
    t=254 if add is not None else dst
    if shift: E(f"v_lshrrev_b32 v{t}, {shift}, v255"); E(f"v_and_b32 v{t}, {mask}, v{t}")
    else: E(f"v_and_b32 v{t}, {mask}, v255")
    if mul!=1: E(f"v_mul_u32_u24 v{t}, {mul}, v{t}")
    if add is not None: E(f"v_add_u32 v{dst}, v{t}, v{add}")
def laneaddr(dst,terms,const=0):
    first=True
    for (sh,m,mul) in terms:
        lanefield(dst,sh,m,mul,None if first else dst); first=False
    if const: E(f"v_add_u32 v{dst}, {const}, v{dst}")
def cvt(d,a,b,mod=""):
    if mod=="abs": E(f"v_cvt_pk_bf16_f32 v{d}, |v{a}|, |v{b}|")
    else: E(f"v_cvt_pk_bf16_f32 v{d}, v{a}, v{b}")
def mfma32(d,a,b,c=None):
    c=vr(d,16) if c is None else c
    E(f"v_mfma_f32_32x32x16_bf16 {vr(d,16)},{a},{b},{c}")
def mfma16(d,a,b,c=None):
    c=vr(d,4) if c is None else c
    E(f"v_mfma_f32_16x16x32_bf16 {vr(d,4)},{a},{b},{c}")
def bload(n,dst,voff,srd,soff,imm=0,fl=""):
    nm={1:"dword",2:"dwordx2",3:"dwordx3",4:"dwordx4"}[n]
    E(f"buffer_load_{nm} {dst},v{voff},{S(srd)},{soff} offen"+(f" offset:{imm}" if imm else "")+(" "+fl if fl else ""))
def bstore(n,src,voff,srd,soff,imm=0,fl=""):
    nm={1:"dword",2:"dwordx2",3:"dwordx3",4:"dwordx4"}[n]
    E(f"buffer_store_{nm} {src},v{voff},{S(srd)},{soff} offen"+(f" offset:{imm}" if imm else "")+(" "+fl if fl else ""))
sSpin=71
EX=["CH_EXIT"]; uid=[0]
def fwait(soff,cnt,t,slp=4):
    uid[0]+=1; lb=f"FW{uid[0]}"
    E(f"v_mov_b32 v{t}, 0"); E(f"s_branch {lb}b"); L(lb); E(f"s_sleep {slp}"); L(lb+"b")
    bload(1,f"v{t+1}",t,WS,soff,0,"sc1"); E(f"s_sub_u32 s{sSpin}, s{sSpin}, 1"); E(f"s_cbranch_scc1 {EX[0]}"); E("s_waitcnt vmcnt(0)")
    E(f"v_cmp_gt_u32 vcc, {cnt}, v{t+1}"); E(f"s_cbranch_vccnz {lb}")
import os
PH=os.environ.get("PH")
def ph(k,t=252):
    if PH:
        E("s_memrealtime s[96:97]"); E("s_lshl_b32 s98, s2, 6"); E(f"s_add_u32 s98, s98, {WS_END+(5<<20)+4*k}"); E(f"v_mov_b32 v{t}, 0"); E("s_waitcnt lgkmcnt(0)"); E(f"v_mov_b32 v{t+1}, s96"); bstore(1,f"v{t+1}",t,WS,"s98")
```

```python
from base import *
from gemm import *
sS=70; sG=89; sPr=90; sPo=91; sX=4; sI=5; sM=6; sP=7; sQ=100; sU=101
import os
DIAG=os.environ.get("DIAG")
TR_OFF=WS_END
def stamp(k):
    if DIAG: E(f"s_memrealtime s[{72+2*k}:{73+2*k}]")
def stamp_init():
    if DIAG:
        E("s_lshl_b32 s88, s2, 2"); E(f"s_add_u32 s88, s88, s{sW}"); E("s_lshl_b32 s88, s88, 11"); E(f"s_add_u32 s88, s88, {TR_OFF}"); stamp(7)
        for k in range(7): E(f"s_mov_b32 s{72+2*k}, 0")
def stamp_acc(n):
    if DIAG:
        E("s_waitcnt lgkmcnt(0)")
        for k in range(8): E(f"v_mov_b32 v{k}, s{72+2*k}")
        E("v_mov_b32 v8, 0"); bstore(4,"v[0:3]",8,WS,"s88"); bstore(4,"v[4:7]",8,WS,"s88",16); E("s_add_u32 s88, s88, 32")
def stamp_out(): pass
def umax(dst,regs):
    regs=list(regs); E(f"v_max3_u32 v{dst}, v{regs[0]}, v{regs[1]}, v{regs[2]}"); regs=regs[3:]
    while len(regs)>=2: E(f"v_max3_u32 v{dst}, v{dst}, v{regs[0]}, v{regs[1]}"); regs=regs[2:]
    if regs: E(f"v_max_u32 v{dst}, v{dst}, v{regs[0]}")
def poll(loads,regs,tmp):
    uid[0]+=1; lb=f"PL{uid[0]}"
    L(lb); loads(); E(f"s_sub_u32 s{sSpin}, s{sSpin}, 1"); E(f"s_cbranch_scc1 {EX[0]}"); E("s_waitcnt vmcnt(0)")
    if len(regs)>1: umax(tmp,regs)
    else: tmp=regs[0]
    E(f"v_cmp_eq_u32 vcc, -1, v{tmp}"); E(f"s_cbranch_vccnz {lb}")
def pub(f,c=True):
    uid[0]+=1; a=f"PB{uid[0]}"
    if c: E(f"s_cmp_eq_u32 s{sF}, 0")
    E(f"s_cbranch_scc1 {a}s"); f(""); E(f"s_branch {a}e"); L(a+"s"); f("sc1"); L(a+"e")
def xcc_check():
    E(f"s_mov_b32 s{sSpin}, 0x80000"); E(f"s_getreg_b32 s{sT}, hwreg(HW_REG_XCC_ID, 0, 4)")
    E(f"s_lshl_b32 s{sA}, s{sX}, 7"); E(f"s_add_u32 s{sA}, s{sA}, {ID_OFF}")
    E(f"v_mov_b32 v1, s{sT}"); E(f"s_lshl_b32 s{sB}, s{sI}, 2"); E(f"v_mov_b32 v2, s{sB}"); bstore(1,"v1",2,WS,f"s{sA}",0,"sc1")
    E("v_min_u32 v2, 27, v255"); E("v_lshlrev_b32 v2, 2, v2")
    poll(lambda: bload(1,"v3",2,WS,f"s{sA}",0,"sc1"),[3],4)
    E("v_cmp_ne_u32 vcc, v1, v3"); E("s_cmp_eq_u64 vcc, 0"); E(f"s_cselect_b32 s{sF}, 1, 0")
def mpoll(t,vA,vA2,vW,vW2,dsoff=0):
    E(f"s_add_u32 s{sT}, s{sM}, 4096")
    def ld(): bload(4,vr(t,4),vA,WS,f"s{sM}",0,"sc1"); bload(4,vr(t+4,4),vA,WS,f"s{sT}",0,"sc1"); bload(2,vr(t+8,2),vA2,WS,f"s{sM}",0,"sc1")
    poll(ld,range(t,t+10),t+10); stamp(0)
    E(f"ds_write_b128 v{vW}, {vr(t,4)}"); E(f"ds_write_b128 v{vW}, {vr(t+4,4)} offset:4096"); E(f"ds_write_b64 v{vW2}, {vr(t+8,2)}")
    E("s_waitcnt lgkmcnt(0)"); E("s_barrier")
def maddr(vA,vA2,vW,vW2,vR,vI,MI):
    E(f"v_lshlrev_b32 v{vA}, 4, v0"); E(f"v_lshlrev_b32 v{vA2}, 3, v0"); E(f"v_add_u32 v{vA2}, 8192, v{vA2}")
    E(f"v_add_u32 v{vW}, {MI}, v{vA}"); E(f"v_add_u32 v{vW2}, {MI}, v{vA2}"); laneaddr(vR,[(0,63,16)],MI)
    lanefield(vI,3,1,0xAAAA); E(f"v_add_u32 v{vI}, 0x4444, v{vI}")
    E(f"s_mul_i32 s{sM}, s{sX}, 10240"); E(f"s_add_u32 s{sM}, s{sM}, {M_OFF}"); E(f"s_mov_b32 s{sS}, 0")
def smf(d,a,b,i): E(f"v_smfmac_f32_16x16x64_bf16 {vr(d,4)},{vr(a,4)},{b},v{i}")
def xred(v,t,op,modes):
    for m in modes:
        E(f"v_mov_b32 v{t}, v{v}"); nop(2); E(f"v_permlane{m}_swap_b32 v{v}, v{t}"); E(f"v_{op}_f32 v{v}, v{v}, v{t}")
def softmax(regs,mx,t,modes):
    r=list(regs); E(f"v_max3_f32 v{mx}, v{r[0]}, v{r[1]}, v{r[2]}"); k=r[3:]
    while len(k)>=2: E(f"v_max3_f32 v{mx}, v{mx}, v{k[0]}, v{k[1]}"); k=k[2:]
    if k: E(f"v_max_f32 v{mx}, v{mx}, v{k[0]}")
    xred(mx,t,"max",modes); E(f"v_mul_f32 v{mx}, s{sE}, v{mx}")
    for x in r: E(f"v_fma_f32 v{x}, v{x}, s{sE}, -v{mx}")
    for x in r: E(f"v_exp_f32 v{x}, v{x}")
    E(f"v_add_f32 v{mx}, v{r[0]}, v{r[1]}"); E(f"v_add_f32 v{t}, v{r[2]}, v{r[3]}")
    for j,x in enumerate(r[4:]): d=(mx,t)[j&1]; E(f"v_add_f32 v{d}, v{d}, v{x}")
    E(f"v_add_f32 v{mx}, v{mx}, v{t}"); xred(mx,t,"add",modes); E(f"v_rcp_f32 v{mx}, v{mx}"); E("s_nop 0")
    for x in r: E(f"v_mul_f32 v{x}, v{x}, v{mx}")
def flagchk(add,last,t):
    uid[0]+=1; lb=f"FC{uid[0]}"
    E(f"s_add_u32 s{sT}, s{sS}, {add}"); E(f"s_and_b32 s{sT}, s{sT}, {64+3}"); E(f"s_cbranch_scc1 {lb}")
    E(f"s_add_u32 s{sG}, s{sG}, 128"); fwait(f"s{sG}",8,t,1); L(lb)
def role_s(ldf="sc1",stf="sc1"):
    MI=90112; QK=100352; KQ=108032
    vA,vA2,vW,vW2,vR,vI,vWL,vQW,vX,vK,vP1,vP2,vL,vSx,vMk=range(104,119)
    ACC=40; STG=64; PT=88
    stamp_init(); maddr(vA,vA2,vW,vW2,vR,vI,MI)
    E(f"s_lshl_b32 s{sH}, s{sX}, 3"); E(f"s_add_u32 s{sH}, s{sH}, s{sI}"); E(f"s_mov_b32 s{sE}, 0x{BSC:x}")
    E(f"v_lshlrev_b32 v{vL}, 4, v255"); E(f"s_mul_i32 s{sT}, s{sW}, {11*2048}"); E(f"v_add_u32 v{vWL}, s{sT}, v{vL}")
    laneaddr(vQW,[(0,15,240),(5,1,40),(4,1,8)],QK)
    E(f"s_and_b32 s{sA}, s{sW}, 1"); E(f"s_lshr_b32 s{sB}, s{sW}, 1"); E(f"s_mul_i32 s{sT}, s{sA}, {96*40}"); E(f"s_lshl_b32 s{sC}, s{sB}, 4"); E(f"s_add_u32 s{sT}, s{sT}, s{sC}"); E(f"v_add_u32 v{vQW}, s{sT}, v{vQW}")
    E(f"s_mul_i32 s{sQ}, s{sA}, {QX_OFF-KX_OFF}"); E(f"s_mul_i32 s{sT}, s{sH}, 12288"); E(f"s_add_u32 s{sQ}, s{sQ}, s{sT}"); E(f"s_add_u32 s{sQ}, s{sQ}, {KX_OFF}")
    E(f"s_mul_i32 s{sL}, s{sA}, 12288"); E(f"s_add_u32 s{sL}, s{sL}, {KQ}"); E(f"v_add_u32 v{vK}, s{sL}, v{vL}")
    E(f"s_mul_i32 s{sD}, s{sA}, {-11264&0xffffffff}"); E(f"s_add_u32 s{sD}, s{sD}, 24576")
    E(f"s_cmp_eq_u32 s{sW}, 1"); E("s_cbranch_scc1 S_A1")
    laneaddr(vX,[(5,1,640),(4,1,160),(2,3,40),(0,3,8)],QK)
    laneaddr(vP1,[(4,3,128),(0,7,16),(3,1,8)]); laneaddr(vP2,[(4,1,8),(0,7,16),(3,1,4)],512)
    E("v_cmp_gt_u32 vcc, 32, v255"); E(f"v_mov_b32 v{vSx}, {BIG}"); E(f"v_mov_b32 v1, 0xff800000"); E(f"v_cndmask_b32 v{vP2}, v{vP2}, v{vSx}, vcc"); E(f"v_cndmask_b32 v{vMk}, 0, v1, vcc")
    E(f"s_mul_i32 s{sP}, s{sH}, 640"); E(f"s_add_u32 s{sP}, s{sP}, {PM_OFF}"); E("s_branch S_A2")
    L("S_A1")
    laneaddr(vX,[(5,1,160),(2,3,40),(0,1,8)],QK+16); E(f"v_mov_b32 v{vP1}, v{vL}"); laneaddr(vP2,[(0,31,16),(5,1,8)],2048)
    E("v_cmp_gt_u32 vcc, 5, v255"); E(f"v_mov_b32 v{vSx}, {BIG}"); E(f"v_lshlrev_b32 v{vMk}, 7, v255"); E(f"v_cndmask_b32 v{vSx}, v{vSx}, v{vMk}, vcc"); E(f"v_mov_b32 v{vMk}, 1"); E(f"s_mov_b32 s{sPr}, {FLG(F_END)}"); E(f"s_mul_i32 s{sP}, s{sH}, 2560"); E(f"s_add_u32 s{sP}, s{sP}, {PX_OFF}")
    L("S_A2")
    E(f"s_lshl_b32 s{sU}, s{sH}, 1"); E(f"s_add_u32 s{sU}, s{sU}, s{sA}"); E(f"s_lshl_b32 s{sU}, s{sU}, 10"); E(f"s_add_u32 s{sU}, s{sU}, {SX_OFF}")
    def kqdma():
        for a,n in ((0,4),(4096,4),(8192,4)):
            E(f"s_add_u32 m0, s{sL}, {a}"); E(f"s_add_u32 s{sT}, s{sQ}, {a}")
            for j in range(n): E(f"buffer_load_dwordx4 v{vL},{S(WS)},s{sT} offen offset:{j*1024} {ldf} lds")
        E(f"s_add_u32 m0, s{sL}, s{sD}"); E(f"s_add_u32 s{sQ}, s{sQ}, {32*12288}"); E(f"buffer_load_dwordx4 v{vL},{S(WS)},s{sU} offen {ldf} lds"); E(f"s_add_u32 s{sU}, s{sU}, {32*2048}")
    E(f"s_cmp_eq_u32 s{sB}, 0"); E(f"s_cselect_b32 s52, s{WQ}, s{WK}"); E(f"s_cselect_b32 s53, s{WQ+1}, s{WK+1}"); E("s_mov_b32 s54, 7864320"); E("s_mov_b32 s55, 0x20000")
    laneaddr(119,[(5,1,16*12288),(4,1,4*12288),(0,15,12)])
    E(f"s_mul_i32 s{sC}, s{sH}, 384"); E(f"s_mul_i32 s{sT}, s{sA}, 192"); E(f"s_add_u32 s{sC}, s{sC}, s{sT}")
    E(f"s_mov_b32 s{sA}, 0x05040100"); E(f"s_mov_b32 s{sB}, 0x07060302")
    place={}; na=nv=0; lds=[]
    for t in range(10):
        for n in range(6):
            if n==5 or (t,n)==(5,4): place[t,n]=('l',len(lds)); lds.append((t,n))
            elif na<32: place[t,n]=('a',8*na); na+=1
            else: place[t,n]=('v',120+8*nv); nv+=1
    assert nv==17 and len(lds)==11
    NP=10
    def wl(p):
        t,i=p>>3,p&7; row=64*t+32*(i>>2)+8*(i&1)+2*((i>>1)&1)
        for q in range(2): E(f"s_add_u32 s{sT}, s{sC}, {(row+q)*12288}"); bload(3,vr(8*(p%NP)+4*q,3),119,52,f"s{sT}")
    for p in range(NP): wl(p)
    for p in range(80):
        t,i=p>>3,p&7; r=8*(p%NP); E(f"s_waitcnt vmcnt({2*min(NP-1,79-p)})")
        for n in range(6):
            k,b=place[t,n]; d={'a':96+n,'v':b+i,'l':80+8*(5-n)+i}[k]
            E(f"v_perm_b32 v{d}, v{r+4+(n>>1)}, v{r+(n>>1)}, s{(sA,sB)[n&1]}")
        for n in range(6):
            k,b=place[t,n]
            if k=='a': E(f"v_accvgpr_write_b32 a{b+i}, v{96+n}")
            if k=='l' and i&3==3: E(f"ds_write_b128 v{vWL}, {vr(80+8*(5-n)+i-3,4)} offset:{b*2048+(i>>2)*1024}")
        if p+NP<80: wl(p+NP)
    ph(2,72); E(f"s_cmp_lt_u32 s{sW}, 2"); E("s_cbranch_scc1 S_LOOP")
    E(f"s_lshl_b32 s{sG}, s{sX}, 11"); E(f"s_add_u32 s{sG}, s{sG}, {FLG(F_QK)}"); fwait(f"s{sG}",8,72,1); ph(3,72); kqdma()
    def fr(j): return 4*j if j<7 else (PT+4*(j-7) if j<11 else 28)
    def stg(j):
        for q in range(2): E(f"ds_read_b128 {vr(STG+8*(j%3)+4*q,4)}, v{vWL} offset:{j*2048+q*1024}")
    L("S_LOOP")
    for j in range(3): stg(j)
    for i in range(24): E(f"v_mov_b32 v{ACC+i}, 0")
    mpoll(PT,vA,vA2,vW,vW2); stamp(1)
    q=[]
    for t in range(10): E(f"ds_read_b128 {vr(4*t,4)}, v{vR} offset:{t*1024}"); q.append(('m',t))
    E(f"s_xor_b32 s{sL}, s{sL}, s{sD}") if False else None
    def need(tag):
        if tag in q:
            i=len(q)-1-q[::-1].index(tag); E(f"s_waitcnt lgkmcnt({min(15,len(q)-1-i)})"); del q[:i+1]
    TV=int(os.environ.get("TV","0"))
    seq=[(t,n) for t in range(7) for n in range(6)]+[(t,n) for p in range(3) for t in range(7,10) for n in (2*p,2*p+1)]
    def qk(n):
        a=ACC+4*n
        return [f"v_permlane32_swap_b32 v{a+i}, v{a+4+i}" for i in range(4)]+[f"v_add_f32 v{a+i}, v{a+i}, v{a+4+i}" for i in range(4)]+\
               [f"v_cvt_pk_bf16_f32 v{a+i}, v{a+2*i}, v{a+2*i+1}" for i in range(2)]+[f"ds_write_b64 v{vQW}, {vr(a,2)} offset:{n*40}"]
    fill=[]; refill={}
    for g,(t,n) in enumerate(seq):
        need(('m',t)); k,b=place[t,n]
        if k=='l': need(('w',b)); refill[g+2]=b+3
        smf(ACC+4*n,4*t,{'a':ar(b,8),'v':vr(b,8),'l':vr(STG+8*(b%3),8)}[k],vI)
        if refill.get(g,99)<11: stg(refill[g]); q.extend([('w',refill[g])]*2)
        for j in {20:[7,8],26:[9,10],30:[0,1],34:[2,3],38:[4],41:[5],44:[6]}.get(g,[]):
            E(f"ds_read_b128 {vr(fr(j),4)}, v{vK} offset:{j*1024}"); q.append(('k',j))
        if TV==1 and g in (48,49,50): E("s_nop 1")
        if TV==1 and g==51: fill=qk(0)+qk(2)
        for x in fill[:2]: E(x); q.extend([('x',0)] if x.startswith("ds_") else [])
        fill=fill[2:]
    def qkwrite():
        stamp(2); E(f"ds_read_b128 {vr(fr(11),4)}, v{vK} offset:{11*1024}")
        for x in (fill+["s_nop 0"] if TV==1 else qk(0)+qk(2))+qk(4): E(x)
    E(f"s_cmp_eq_u32 s{sW}, 0"); E("s_cbranch_scc0 S_W1")
    qkwrite()
    for i in range(4): E(f"v_mov_b32 v{80+i}, v{vMk}")
    E("s_waitcnt lgkmcnt(0)"); E("s_barrier"); stamp(3)
    for v in range(6):
        for rd in range(2): E(f"ds_read_b64_tr_b16 {vr(ACC+4*v+2*rd,2)}, v{vX} offset:{v*1280+rd*320}")
    for v in range(6):
        E(f"s_waitcnt lgkmcnt({10-2*v})"); x=vr(ACC+4*v,4)
        mfma16(72,vr(fr(2*v),4),x,"0" if v==0 else None); mfma16(76,vr(fr(2*v+1),4),x,"0" if v==0 else None); mfma16(80,x,x)
    stamp(4); nop(7)
    D8=" row_ror:8 row_mask:0xf bank_mask:0xc"
    for i in range(4): E(f"v_mov_b32_dpp v{72+i}, v{76+i}"+D8)
    for i in range(2): E(f"v_mov_b32_dpp v{80+i}, v{82+i}"+D8)
    E("v_max3_f32 v84, v72, v73, v74"); E("v_max3_f32 v85, v75, v80, v81"); E("v_max_f32 v86, v84, v85"); E("v_max_f32 v84, v84, v85")
    def red(op):
        nop(2); E("v_permlane32_swap_b32 v84, v86"); E(f"v_{op}_f32 v85, v84, v86"); E(f"v_{op}_f32 v84, v84, v86")
        nop(2); E("v_permlane16_swap_b32 v84, v85"); E(f"v_{op}_f32 v84, v84, v85"); nop(2)
        E(f"v_{op}_f32_dpp v84, v84, v84 row_ror:8 row_mask:0xf bank_mask:0xf")
    red("max"); E(f"v_mul_f32 v84, s{sE}, v84")
    R6=(72,73,74,75,80,81)
    for x in R6: E(f"v_fma_f32 v{x}, v{x}, s{sE}, -v84")
    for x in R6: E(f"v_exp_f32 v{x}, v{x}")
    E("v_add_f32 v84, v72, v73"); E("v_add_f32 v85, v74, v75"); E("v_add_f32 v87, v80, v81"); E("v_add_f32 v84, v84, v85"); E("v_add_f32 v86, v84, v87"); E("v_add_f32 v84, v84, v87")
    red("add"); E("v_rcp_f32 v84, v84"); E(f"s_cmp_eq_u32 s{sF}, 0")
    for x in R6: E(f"v_mul_f32 v{x}, v{x}, v84")
    cvt(72,72,73,"abs"); cvt(73,74,75,"abs"); cvt(74,80,81,"abs")
    pub(lambda f:(bstore(2,"v[72:73]",vP1,WS,f"s{sP}",0,f),bstore(1,"v74",vP2,WS,f"s{sP}",0,f)),False)
    E(f"s_add_u32 s{sP}, s{sP}, 20480"); E("s_branch S_END")
    L("S_W1"); E(f"s_cmp_eq_u32 s{sW}, 1"); E("s_cbranch_scc1 S_W1B")
    qkwrite(); E("s_waitcnt lgkmcnt(0)"); E("s_barrier")
    E(f"s_bitcmp1_b32 s{sS}, 0"); E(f"s_cselect_b32 s{sT}, -1, 1"); E(f"s_mul_i32 s{sT}, s{sT}, 26624"); E(f"s_add_u32 s{sL}, s{sL}, s{sT}"); flagchk(1,63,72); kqdma(); E("s_branch S_END")
    L("S_W1B")
    qkwrite()
    E("s_waitcnt lgkmcnt(0)"); E("s_barrier"); stamp(3)
    for h in range(2):
        for u in range(6):
            for rd in range(2): E(f"ds_read_b64_tr_b16 {vr(ACC+4*u+2*rd,2)}, v{vX} offset:{(6*h+u)*640+rd*320}")
        for u in range(6): E(f"s_waitcnt lgkmcnt({10-2*u})"); mfma32(72,vr(ACC+4*u,4),vr(fr(6*h+u),4),"0" if h+u==0 else None)
        nop(8)
    stamp(4);
    for u in range(2): E(f"ds_read_b128 {vr(32+4*u,4)}, v{vK} offset:{12288+u*1024}")
    E("s_waitcnt lgkmcnt(0)")
    for j in range(8): E(f"v_lshlrev_b32 v{PT+2*j}, 16, v{32+j}"); E(f"v_and_b32 v{PT+2*j+1}, 0xffff0000, v{32+j}")
    softmax(list(range(PT,PT+16))+[72,73,74,75],76,77,(32,))
    pack(PT,PT,8); pack(72,72,2)
    for u in range(2): bstore(4,vr(PT+4*u,4),vP1,WS,f"s{sP}",u*1024,stf)
    bstore(2,"v[72:73]",vP2,WS,f"s{sP}",0,stf)
    E(f"s_add_u32 s{sP}, s{sP}, {32*2560}");
    L("S_END"); stamp(5); stamp_acc(6)
    E(f"s_bitcmp1_b32 s{sS}, 0"); E(f"s_cselect_b32 s{sT}, -1, 1"); E(f"s_mul_i32 s{sT}, s{sT}, 26624"); E(f"v_add_u32 v{vK}, s{sT}, v{vK}")
    E(f"s_add_u32 s{sM}, s{sM}, 40960"); E(f"s_add_u32 s{sS}, s{sS}, 1"); E(f"s_cmp_lt_u32 s{sS}, 64"); E("s_cbranch_scc1 S_LOOP")
    E(f"s_cmp_eq_u32 s{sW}, 1"); E(f"s_cbranch_scc0 {EX[0]}"); E("s_waitcnt vmcnt(0)"); signal(f"s{sPr}",None,vMk,vSx); ph(4,72); E(f"s_branch {EX[0]}")
def role_v(ldf="sc1",stf="sc1"):
    vA,vA2,vW,vW2,vR,vI,vZ,vZm,vXs,vXl,vMo,vL,vXs2,vXl2,vOwn,vPa,vPb=range(144,161)
    ACC=40; VO=64; VN=80; P=96; PT=116; ZM=128; D=132; XR=136
    stamp_init(); maddr(vA,vA2,vW,vW2,vR,vI,0)
    laneaddr(vZ,[(3,1,640),(4,3,128),(0,7,16)]); laneaddr(vZm,[(5,1,1280),(3,1,640),(0,7,16),(4,1,8)],512)
    laneaddr(vXs,[(3,1,81920),(4,3,64),(0,7,8)]); laneaddr(vXl,[(3,1,512),(4,3,64),(0,7,8)])
    laneaddr(vMo,[(0,7,16),(4,1,8),(5,1,4)]); E("v_and_b32 v1, 8, v255"); E("v_cmp_eq_u32 vcc, 0, v1"); E(f"v_mov_b32 v1, {BIG}"); E(f"v_lshlrev_b32 v{vL}, 4, v255"); E(f"v_cndmask_b32 v{vMo}, v1, v{vMo}, vcc")
    lanefield(2,3,1,1); E(f"v_add_u32 v3, 2, v2"); E("v_lshlrev_b32 v4, 1, v2"); E("v_add_u32 v5, 1, v4"); E(f"s_lshr_b32 s{sT}, s{sX}, 1")
    for d,src,c in ((vXs2,vXs,3),(vXs,vXs,2),(vXl2,vXl,5),(vXl,vXl,4)):
        E(f"v_cmp_eq_u32 vcc, s{sX}, v{c}"); nop(2); E(f"v_cndmask_b32 v{d}, v{src}, v1, vcc")
    E(f"v_cmp_eq_u32 vcc, s{sT}, v2"); nop(2); E(f"v_cndmask_b32 v{vOwn}, 0, -1, vcc")
    E(f"v_lshlrev_b32 v{vPa}, 4, v0"); E(f"v_lshlrev_b32 v{vPb}, 2, v0"); E(f"v_add_u32 v{vPb}, 4096, v{vPb}")
    E(f"s_sub_u32 s{sC}, s{sI}, 8"); E(f"s_lshl_b32 s{sC}, s{sC}, 2"); E(f"s_add_u32 s{sC}, s{sC}, s{sW}")
    E(f"s_mul_i32 s{sT}, s{sX}, 5120"); E(f"s_add_u32 s{sP}, s{sT}, {PM_OFF}"); E(f"s_mul_i32 s{sQ}, s{sC}, 20480"); E(f"s_add_u32 s{sQ}, s{sQ}, s{sT}")
    E(f"s_lshl_b32 s{sT}, s{sC}, 10"); E(f"s_add_u32 s{sT}, s{sT}, {XB_OFF}"); E(f"s_lshl_b32 s{sA}, s{sX}, 8"); E(f"s_add_u32 s{sA}, s{sA}, s{sT}")
    E(f"s_mul_i32 s{sB}, s{sX}, 81920"); E(f"s_add_u32 s{sB}, s{sB}, s{sT}")
    E(f"s_lshl_b32 s{sU}, s{sC}, 7"); E(f"s_add_u32 s{sU}, s{sU}, 40960")
    E(f"s_mul_i32 s{sD}, s{sX}, 80"); E(f"s_add_u32 s{sD}, s{sD}, s{sC}"); E(f"s_mul_i32 s{sD}, s{sD}, 81920"); E(f"s_add_u32 s{sD}, s{sD}, {BW_OFF}")
    E(f"v_mov_b32 v161, v{vFl}"); E("s_cmp_eq_u32 s2, 64"); E(f"s_cselect_b32 s{sT}, 0, {BIG}"); E(f"v_or_b32 v163, s{sT}, v{vFl}"); E("v_mov_b32 v164, -1"); E("v_mov_b32 v165, -1"); E(f"s_mov_b32 s{sPr}, {FLG(F_PR)}")
    E(f"s_lshl_b32 s{sG}, s{sX}, 7"); E(f"s_add_u32 s{sG}, s{sG}, {FLG(F_B)}"); fwait(f"s{sG}",40,0,2); ph(2,0)
    for j in range(80):
        if j%4==0: E(f"s_add_u32 s{sT}, s{sD}, {j*1024}")
        bload(4,ar(4*j,4) if j<64 else vr(192+4*(j-64),4),vL,WS,f"s{sT}",(j%4)*1024,ldf)
    E(f"s_lshl_b32 s{sG}, s{sX}, 11"); E(f"s_add_u32 s{sG}, s{sG}, {FLG(F_VO)}"); fwait(f"s{sG}",8,0,1); ph(3,0)
    for t in range(4): bload(4,vr(VN+4*t,4),vZ,WS,f"s{sQ}",t*1280,ldf)
    L("V_LOOP")
    for i in range(16): E(f"v_mov_b32 v{ACC+i}, 0")
    mpoll(PT,vA,vA2,vW,vW2); stamp(1)
    for t in range(10): E(f"ds_read_b128 {vr(4*t,4)}, v{vR} offset:{t*1024}")
    for i in range(16): E(f"v_mov_b32 v{VO+i}, v{VN+i}")
    E(f"s_add_u32 s{sT}, s{sQ}, {Z_S}")
    for t in range(4): bload(4,vr(VN+4*t,4),vZ,WS,f"s{sT}",t*1280,ldf)
    E(f"s_bitcmp1_b32 s{sS}, 1"); E(f"s_cselect_b32 s{sPo}, -1, 1"); E(f"s_mul_i32 s{sPo}, s{sPo}, 655360"); E(f"s_add_u32 s{sPo}, s{sPo}, s{sA}"); E(f"s_add_u32 s{sT}, s{sPo}, 163840")
    E(f"v_mov_b32 v162, s{sS}"); bstore(1,"v162",163,WS,f"s{sPr}",0,"sc1")
    bstore(2,"v[164:165]",vXs,WS,f"s{sPo}",0,"sc1"); bstore(2,"v[164:165]",vXs2,WS,f"s{sT}",0,"sc1")
    for k in range(10):
        E(f"s_waitcnt lgkmcnt({9-k})")
        for t in range(4):
            f=t*10+k; smf(ACC+4*t,4*k,ar(8*f,8) if f<32 else vr(192+8*(f-32),8),vI)
    E(f"s_bitcmp1_b32 s{sS}, 0"); E(f"s_cselect_b32 s{sT}, -1, 1"); E(f"s_mul_i32 s{sT}, s{sT}, 10240")
    for r in (vW,vW2,vR): E(f"v_add_u32 v{r}, s{sT}, v{r}")
    nop(3)
    for a in (ACC,ACC+8):
        for i in range(4): E(f"v_permlane32_swap_b32 v{a+i}, v{a+4+i}")
        for i in range(4): E(f"v_add_f32 v{a+i}, v{a+i}, v{a+4+i}")
    pack(ZM,ACC,2); pack(ZM+2,ACC+8,2)
    bstore(2,vr(ZM,2),vZm,WS,f"s{sQ}",0,stf); bstore(2,vr(ZM+2,2),vZm,WS,f"s{sQ}",2560,stf)
    E(f"s_cmp_eq_u32 s{sS}, 63"); E("s_cbranch_scc1 V_END"); flagchk(2,62,PT)
    stamp(2)
    if int(os.environ.get("DP","0")): E(f"s_sleep {os.environ['DP']}")
    def ld():
        for t in range(4): bload(4,vr(P+4*t,4),vZ,WS,f"s{sP}",t*1280,"sc1")
        bload(2,vr(P+16,2),vZm,WS,f"s{sP}",0,"sc1"); bload(2,vr(P+18,2),vZm,WS,f"s{sP}",2560,"sc1")
    CP=os.environ.get("CP","1")=="1"
    if not CP: poll(ld,range(P,P+20),PT); stamp(3)
    if CP: poll(lambda:(bload(4,vr(PT,4),vPa,WS,f"s{sP}",0,"sc1"),bload(1,vr(PT+4),vPb,WS,f"s{sP}",0,"sc1")),range(PT,PT+5),PT+5)
    if CP: E(f"ds_write_b128 v{vPa}, {vr(PT,4)} offset:20480"); E(f"ds_write_b32 v{vPb}, v{PT+4} offset:20480"); E("s_waitcnt lgkmcnt(0)"); E("s_barrier"); stamp(3)
    for t in range(4*CP): E(f"ds_read_b128 {vr(P+4*t,4)}, v{vZ} offset:{20480+t*1280}")
    for t in range(2*CP): E(f"ds_read_b64 {vr(P+16+2*t,2)}, v{vZm} offset:{20480+t*2560}")
    for t in range(4): E(f"s_waitcnt lgkmcnt({5-t})"); mfma16(D,vr(VO+4*t,4),vr(P+4*t,4),"0" if t==0 else None)
    E("s_waitcnt lgkmcnt(0)"); mfma16(D,vr(ZM,4),vr(P+16,4))
    E(f"s_add_u32 s{sT}, s{sA}, 163840"); nop(7)
    E(f"v_permlane32_swap_b32 v{D}, v{D+2}"); E(f"v_permlane32_swap_b32 v{D+1}, v{D+3}"); nop(1)
    for i in range(2):
        E(f"v_add_f32_dpp v{XR+i}, v{D+2+i}, v{D+i} row_ror:8 row_mask:0xf bank_mask:0x3"); E(f"v_add_f32_dpp v{XR+i}, v{D+i}, v{D+2+i} row_ror:8 row_mask:0xf bank_mask:0xc")
    for i in range(2): E(f"v_min_u32 v{XR+i}, -2, v{XR+i}")
    bstore(2,vr(XR,2),vXs,WS,f"s{sA}",0,"sc1"); bstore(2,vr(XR,2),vXs2,WS,f"s{sT}",0,"sc1")
    for i in range(2): E(f"v_and_b32 v{D+i}, v{XR+i}, v{vOwn}")
    stamp(4)
    if int(os.environ.get("DX","10")): E(f"s_sleep {os.environ.get('DX',10)}")
    poll(lambda:(bload(2,vr(XR+2,2),vXl,WS,f"s{sB}",0,"sc1"),bload(2,vr(XR+4,2),vXl2,WS,f"s{sB}",256,"sc1")),range(XR+2,XR+6),PT)
    stamp(5)
    for i in range(2): E(f"v_add_f32 v{XR+2+i}, v{XR+2+i}, v{XR+4+i}")
    for i in range(2): E(f"v_add_f32 v{XR+2+i}, v{XR+2+i}, v{D+i}")
    E(f"s_add_u32 s{sT}, s{sM}, s{sU}"); nop(1)
    for i in range(2): E(f"v_add_f32_dpp v{XR+4+i}, v{XR+2+i}, v{XR+2+i} row_ror:8 row_mask:0xf bank_mask:0xf")
    cvt(XR+6,XR+4,XR+5); E(f"v_min_u32 v{XR+6}, -2, v{XR+6}")
    pub(lambda f: bstore(1,f"v{XR+6}",vMo,WS,f"s{sT}",0,f))
    stamp(6); stamp_acc(7)
    for r,c in ((sM,40960),(sP,20480),(sQ,Z_S),(sS,1)): E(f"s_add_u32 s{r}, s{r}, {c}")
    E(f"s_and_b32 s{sT}, s{sS}, 3"); E(f"s_cselect_b32 s{sT}, 1, -3"); E(f"s_mul_i32 s{sT}, s{sT}, 327680"); E(f"s_add_u32 s{sA}, s{sA}, s{sT}"); E(f"s_add_u32 s{sB}, s{sB}, s{sT}")
    E("s_branch V_LOOP")
    L("V_END"); E(f"s_lshr_b32 s{sT}, s{sC}, 4"); E(f"s_lshl_b32 s{sT}, s{sT}, 7"); E(f"s_add_u32 s{sT}, s{sT}, {FLG(F_END)}"); E("s_waitcnt vmcnt(0)"); E("v_mov_b32 v162, 1"); E("s_barrier"); signal(f"s{sT}",None,162,161); ph(4,0); E(f"s_branch {EX[0]}")
```

```python
from base import *
SLOT=24576; NSLOT=5
vRING=192; NRING=8
vRB=224
vD1=230; vD2=231; vXO=232; vL16=233; vZO=234; vT=236; vFl=238; vOne=239; sBn=90; sAn=91; sFl=92; sFl2=93
import os
STF=os.environ.get("STF","sc1")
XG=int(os.environ.get("XG","1"))
GD=os.environ.get("GD")
def gst(k):
    if GD: E(f"s_memrealtime s[{72+2*k}:{73+2*k}]")
def gout():
    if GD:
        E("s_waitcnt lgkmcnt(0)")
        for k in range(4): E(f"v_mov_b32 v{240+k}, s{72+2*k}")
        E("v_mov_b32 v244, 0"); E(f"s_lshl_b32 s88, s{sTask}, 4"); E(f"s_add_u32 s88, s88, {WS_END+(4<<20)}"); bstore(4,"v[240:243]",244,WS,"s88"); E(f"s_add_u32 s{sTask}, s{sTask}, 256")
def ring_bases(b,hi_mul):
    laneaddr(b,[(5,1,hi_mul),(2,3,64),(4,1,32),(0,3,8)])
    E(f"v_add_u32 v{b+1}, {2*SLOT}, v{b}"); E(f"v_add_u32 v{b+2}, {4*SLOT}, v{b}")
def dma_off(dst,RS,TPS):
    laneaddr(dst,[(2,7,RS),(5,1,TPS),(0,3,16)])
    E(f"s_mul_i32 s{sT}, s{sW}, {8*RS}"); E(f"v_add_u32 v{dst}, s{sT}, v{dst}")
def signal(soff,vm=None,one=vOne,fl=vFl):
    E(f"buffer_atomic_add v{one},v{fl},{S(WS)},{soff} offen sc1")
    if vm: vm.op('f')
def drain_signal(soff):
    E("s_waitcnt vmcnt(0)"); E("s_barrier"); signal(soff)
def run_stages(vm,stages,pre=None,loop=None):
    n=len(stages)
    def dma(i):
        if i>=n and not loop: return []
        r=[]; i%=n
        for j,(srd,voff,sb,c) in enumerate(stages[i]['dma']):
            def f(i=i,j=j,srd=srd,voff=voff,sb=sb,c=c):
                E(f"s_add_u32 m0, s{sL}, {(i%NSLOT)*SLOT+j*1024}"); E(f"s_add_u32 s{sT}, s{sb}, {c}")
                E(f"buffer_load_dwordx4 v{voff},{S(srd)},s{sT} offen lds"); vm.op(('d',i))
            r.append(f)
        return r
    gst(0); E("s_barrier")
    for f in dma(0)+dma(1): f()
    if pre: pre()
    for f in dma(2)+dma(3): f()
    flat=[(i,k) for i in range(n) for k in range(len(stages[i]['mm']))]
    LA=NRING-2
    def rd(g):
        i,k=flat[g]; rb,o0,o1,_=stages[i]['mm'][k]; sl=i%NSLOT; r=vRING+4*(g%NRING)
        for q,o in enumerate((o0,o1)):
            E(f"ds_read_b64_tr_b16 {vr(r+2*q,2)},v{rb+sl//2} offset:{(sl%2)*SLOT+o}")
    BK=int(os.environ.get("BK","1"))
    def body():
        pend=[]; N=len(flat)
        for g,(i,k) in enumerate(flat):
            nk=len(stages[i]['mm'])
            if k==0:
                if not BK or (g==0 and not loop):
                    vm.wait(('d',0 if BK else ((i+1)%n if loop else min(i+1,n-1))))
                    if i==0: vm.wait('x')
                    E("s_barrier")
                pend=dma(i+4)
                if i==0:
                    gst(1)
                    if not(BK and loop):
                        for q in range(LA): rd(q)
            if BK and k==nk-LA and (loop or i+1<n): vm.wait(('d',(i+1)%n)); E("s_barrier")
            if g+LA<N: rd(g+LA)
            elif BK and loop: rd(g+LA-N)
            left=LA if BK and loop else min(LA,N-1-g)
            E(f"s_waitcnt lgkmcnt({min(2*left,15)})")
            stages[i]['mm'][k][3](vr(vRING+4*(g%NRING),4))
            if pend and (k%2==1 if BK else k%3==1): pend.pop(0)()
            for f in stages[i].get('post',{}).get(k,[]): f()
            if k==nk-1: assert not pend
        gst(2)
    if loop and BK:
        vm.all(); E("s_barrier")
        for q in range(LA): rd(q)
        assert len(flat)%NRING==0
    if loop:
        vm.all(); m=len(out); body(); del out[m:]; L(loop)
    body()
def xload(vm,fl=""):
    for t in range(40):
        if t%4==0: E(f"s_add_u32 s{sT}, s{sA}, {t*1024}")
        bload(4,ar(4*t,4),vL16,WS,f"s{sT}",(t%4)*1024,fl); vm.op('x')
def rowbase(base=0):
    E(f"s_lshl_b32 s{sC}, s{sR}, 2"); E(f"s_add_u32 s{sC}, s{sC}, s{sW}"); E(f"s_mul_i32 s{sA}, s{sC}, {32*1280}")
    if base: E(f"s_add_u32 s{sA}, s{sA}, {base}")
def s1_stages(NT,KS,RS,pairs,swap=()):
    st=[]; NP=NT//2
    for i in range(40//KS):
        d=[(pairs[j%NP][0],vD1,sB,(i*KS*16+32*(j//NP))*RS+pairs[j%NP][1]) for j in range(NP*KS//2)]
        mm=[]
        for kk in range(KS):
            for f in range(NT):
                o=2*(kk&1)*6144+(NP*(kk>>1)+(f>>1))*1024+(f&1)*512; t=i*KS+kk
                def em(w,f=f,t=t):
                    a,b=(w,ar(4*t,4)) if f not in swap else (ar(4*t,4),w)
                    mfma32(16*f,a,b,"0" if t==0 else None)
                mm.append((vRB,o,o+256,em))
        st.append(dict(dma=d,mm=mm))
    return st
def s2_stages(vm,JS,KSTR,perm):
    st=[]
    def epi(i):
        acc=32*(i&1)
        for f in range(2):
            for u in range(2):
                for j in range(4): cvt(144+8*f+4*u+perm[j],acc+16*f+8*u+2*j,acc+16*f+8*u+2*j+1)
            E(f"s_add_u32 s{sT}, s{sD}, {(2*i+f)*4*JS}")
            for u in range(2): bstore(4,vr(144+8*f+4*u,4),vZO,WS,f"s{sT}",2*u*KSTR,STF); vm.op('st')
    for i in range(10):
        d=[(WO,vD2,sB2,32*j*1280+i*128) for j in range(6)]
        mm=[]
        for u in range(12):
            for f in range(2):
                o=2*(u&1)*6144+(u>>1)*1024+f*512
                def em(w,f=f,u=u,i=i): mfma32(32*(i&1)+16*f,vr(96+4*u,4),w,"0" if u==0 else None)
                mm.append((vRB+3,o,o+6144,em))
        post={}
        if i>0: post[8]=[lambda i=i: epi(i-1)]
        st.append(dict(dma=d,mm=mm,post=post))
    return st,epi
def common_setup():
    ring_bases(vRB,6144); ring_bases(vRB+3,256)
    E(f"v_lshlrev_b32 v{vL16}, 4, v255")
    dma_off(vD2,1280,64)
    E(f"s_mul_i32 s{sL}, s{sW}, 6144")
    E(f"v_or_b32 v{vOne}, s{sW}, v255"); E(f"v_cmp_eq_u32 vcc, 0, v{vOne}"); E(f"v_mov_b32 v{vOne}, 1"); E(f"v_mov_b32 v{vFl}, {BIG}"); E(f"v_cndmask_b32 v{vFl}, v{vFl}, 0, vcc")
def pack(dst,src,n):
    for j in range(n): cvt(dst+j,src+2*j,src+2*j+1)
def qk_epi(vm):
    nop(12); pack(0,0,96); nop(2)
    for u in range(12): mfma32(96,vr(48+4*u,4),vr(4*u,4),"0" if u==0 else None)
    E(f"s_lshl_b32 s{sE}, s{sC}, 5"); E(f"s_add_u32 s{sE}, s{sE}, s{sH}"); E(f"s_mul_i32 s{sD}, s{sE}, 12288")
    laneaddr(vT,[(3,1,1024),(5,1,256),(4,1,128),(0,7,16)])
    for u in range(12):
        if u%4==0: E(f"s_add_u32 s{sT}, s{sD}, {KX_OFF+u*1024}")
        bstore(4,vr(48+4*u,4),vT,WS,f"s{sT}",(u&2)*1024+(u&1)*512,STF); vm.op('st')
    for u in range(12):
        if u%4==0: E(f"s_add_u32 s{sT}, s{sD}, {QX_OFF+u*1024}")
        bstore(4,vr(4*u,4),vL16,WS,f"s{sT}",(u%4)*1024,STF); vm.op('st')
    E(f"s_lshl_b32 s{sT}, s{sE}, 11"); E(f"s_add_u32 s{sT}, s{sT}, {SX_OFF}")
    lanefield(vT,5,1,4); E(f"v_and_b32 v{vT+1}, 31, v255"); E(f"v_sub_u32 v{vT}, v{vT+1}, v{vT}"); E(f"v_mov_b32 v{vT+1}, 0xff800000")
    for i in range(16):
        E(f"v_cmp_le_i32 vcc, {8*(i>>2)+(i&3)}, v{vT}"); nop(2); E(f"v_cndmask_b32 v{96+i}, v{vT+1}, v{96+i}, vcc")
    pack(96,96,8)
    for q in range(2): bstore(4,vr(96+4*q,4),vL16,WS,f"s{sT}",q*1024,STF); vm.op('st')
def loop_task(vo):
    vm=VM(); dma_off(vD1,12288,64); rowbase(XF_OFF); E(f"s_mul_i32 s{sB}, s{sH}, 384"); E(f"s_mov_b32 s{sFl2}, {FLG(255)}"); E(f"s_mov_b32 s{sPh}, 0")
    def top():
        E(f"s_add_u32 s{sT}, s{sPh}, 1"); E(f"s_min_u32 s{sT}, s{sT}, 7"); E(f"s_and_b32 s86, s{sT}, 6"); E("s_lshl_b32 s86, s86, 1"); E("s_lshr_b32 s87, s7, 2"); E("s_add_u32 s87, s87, s86")
        E(f"s_and_b32 s{sT}, s{sT}, 1"); E(f"s_lshl_b32 s{sT}, s{sT}, 2"); E(f"s_and_b32 s86, s{sH}, {0x1b}"); E(f"s_or_b32 s86, s86, s{sT}")
        E(f"s_add_u32 s{sT}, s{sR}, 2"); E(f"s_cmp_eq_u32 s{sPh}, 0"); E(f"s_cselect_b32 s86, s{sH}, s86"); E(f"s_cselect_b32 s87, s{sT}, s87")
        E(f"s_sub_u32 s{sT}, s87, s{sR}"); E(f"s_mul_i32 s{sT}, s{sT}, {128*1280}"); E(f"s_add_u32 s{sAn}, s{sA}, s{sT}"); E(f"s_cmp_eq_u32 s{sT}, 0"); E("s_cselect_b64 s[94:95], 0, -1")
        if vo: E(f"s_mul_i32 s{sD}, s{sC}, {Z_S}"); E(f"s_mul_i32 s{sBn}, s{sH}, 640"); E(f"s_add_u32 s{sD}, s{sD}, s{sBn}"); E(f"s_mul_i32 s{sB2}, s{sH}, {192*1280}")
    def nb(): E(f"s_mul_i32 s{sB}, s86, 384")
    def xl(t):
        def f():
            E(f"s_add_u32 s{sT}, s{sAn}, {t*1024}"); E("s_mov_b64 exec, s[94:95]"); bload(4,ar(4*t,4),vL16,WS,f"s{sT}"); vm.op('y'); E("s_mov_b64 exec, -1")
        return f
    if vo:
        laneaddr(vZO,[(3,3,20480),(5,1,128),(0,7,16)])
        a=s1_stages(6,4,12288,[(WV,0),(WV,128),(WV,256)]); b,epi=s2_stages(vm,20480,128,[0,1,2,3]); st=a+b
        for t in range(40): st[1+t*19//40].setdefault('post',{}).setdefault(13+3*(t%3),[]).append(xl(t))
        a[-1]['post'][23]=[lambda:(nop(12),pack(96,0,48))]
        b[9]['post'][23]=[lambda:(nop(12),epi(9))]
    else:
        st=s1_stages(12,2,12288,[(WQ,0),(WQ,128),(WQ,256),(WK,0),(WK,128),(WK,256)])
        for i in range(20): st[i]['post']={14:[xl(2*i)],23:[xl(2*i+1)]}
        st[19]['post'][23].append(lambda: qk_epi(vm))
    st[0].setdefault('post',{})[0]=[top]
    st[15]['post'].setdefault(23,[]).append(nb); st[10]['post'].setdefault(0,[]).append(lambda: gst(0)); st[19]['post'].setdefault(22,[]).append(lambda: gst(3))
    st[3].setdefault('post',{}).setdefault(19,[]).append(lambda: signal(f"s{sFl2}",vm))
    lb=f"TL{vo}"
    run_stages(vm,st,lambda: xload(vm),loop=lb)
    E(f"s_lshl_b32 s{sFl2}, s{sR}, 7"); E(f"s_add_u32 s{sFl2}, s{sFl2}, s{sFl}"); E(f"s_mov_b32 s{sH}, s86"); E(f"s_mov_b32 s{sR}, s87"); E(f"s_mov_b32 s{sA}, s{sAn}")
    E(f"s_lshl_b32 s{sC}, s{sR}, 2"); E(f"s_add_u32 s{sC}, s{sC}, s{sW}"); gout(); E(f"s_add_u32 s{sPh}, s{sPh}, 1"); E(f"s_cmp_lt_u32 s{sPh}, 8"); E(f"s_cbranch_scc1 {lb}")
    drain_signal(f"s{sFl2}")
def task_b():
    vm=VM(); E(f"s_mul_i32 s{sB2}, s{sH}, {192*1280}")
    laneaddr(vD1,[(0,31,12288),(5,1,8)]); laneaddr(vZO,[(3,3,81920),(5,1,256),(0,7,16)])
    E(f"s_lshl_b32 s{sC}, s{sR}, 2"); E(f"s_add_u32 s{sC}, s{sC}, s{sW}")
    E(f"s_mul_i32 s{sA}, s{sC}, {32*12288}"); E(f"s_mul_i32 s{sT}, s{sH}, 384"); E(f"s_add_u32 s{sA}, s{sA}, s{sT}")
    E(f"s_lshr_b32 s{sD}, s{sH}, 3"); E(f"s_mul_i32 s{sD}, s{sD}, {80*81920}")
    E(f"s_bfe_u32 s{sT}, s{sH}, 0x20001"); E(f"s_mul_i32 s{sT}, s{sT}, 20480"); E(f"s_add_u32 s{sD}, s{sD}, s{sT}")
    E(f"s_and_b32 s{sT}, s{sH}, 1"); E(f"s_lshl_b32 s{sT}, s{sT}, 7"); E(f"s_add_u32 s{sD}, s{sD}, s{sT}")
    E(f"s_lshl_b32 s{sT}, s{sC}, 10"); E(f"s_add_u32 s{sD}, s{sD}, s{sT}"); E(f"s_add_u32 s{sD}, s{sD}, {BW_OFF}")
    def pre():
        for u in range(24): bload(2,vr(96+2*u,2),vD1,WV,f"s{sA}",16*u); vm.op('x')
    b,epi=s2_stages(vm,81920,256,[0,2,1,3])
    run_stages(vm,b,pre); nop(12); epi(9)
def task_a():
    vm=VM(); dma_off(vD1,3840,40); rowbase(XF_OFF); E(f"s_mul_i32 s{sB}, s{sH}, 160")
    run_stages(vm,s1_stages(12,2,3840,[(WQKV,1280*m+80*p) for m in range(3) for p in range(2)],swap=(8,9,10,11)),lambda: xload(vm))
    E("v_cmp_gt_u32 vcc, 32, v255"); E(f"v_and_b32 v{vT}, 31, v255"); E(f"v_cmp_eq_u32 s[94:95], 20, v{vT}")
    E(f"s_mov_b32 s{sE}, 0x{QSC:x}"); E(f"v_mov_b32 v{vT}, 0x3f803f80")
    E(f"s_lshl_b32 s{sD}, s{sH}, 8"); E(f"s_add_u32 s{sD}, s{sD}, s{sC}"); E(f"s_lshl_b32 s{sD}, s{sD}, 11")
    nop(8)
    for f in range(12):
        b=16*f
        if f<4:
            for j in range(12): E(f"v_mul_f32 v{b+j}, s{sE}, v{b+j}")
        if f<8:
            pack(b,b,6); E(f"v_cndmask_b32 v{b+4}, 0, v{b+4}, vcc"); E(f"v_cndmask_b32 v{b+5}, 0, v{b+5}, vcc")
            E(f"v_mov_b32 v{b+6}, 0"); E(f"v_mov_b32 v{b+7}, 0")
        else:
            pack(b,b,8)
            for j in range(8): E(f"v_cndmask_b32 v{b+j}, v{b+j}, v{vT}, s[94:95]")
        E(f"s_add_u32 s{sT}, s{sD}, {AQ_OFF+(f>>2)*AQ_SZ+(f&3)*64*2048}")
        for u in range(2): bstore(4,vr(b+4*u,4),vL16,WS,f"s{sT}",u*1024,STF)
def scale8(d,src,g,t):
    for j in range(8):
        E(f"v_lshlrev_b32 v{t}, 16, v{src+j}"); E(f"v_and_b32 v{t+1}, 0xffff0000, v{src+j}"); E(f"v_mul_f32 v{t}, v{g}, v{t}"); E(f"v_mul_f32 v{t+1}, v{g}, v{t+1}"); cvt(d+j,t,t+1)
def add8(d,a,b,t):
    for j in range(8):
        E(f"v_lshlrev_b32 v{t}, 16, v{a+j}"); E(f"v_and_b32 v{t+1}, 0xffff0000, v{a+j}"); E(f"v_lshlrev_b32 v{t+2}, 16, v{b+j}"); E(f"v_and_b32 v{t+3}, 0xffff0000, v{b+j}")
        E(f"v_add_f32 v{t}, v{t}, v{t+2}"); E(f"v_add_f32 v{t+1}, v{t+1}, v{t+3}"); cvt(d+j,t,t+1)
def task_ao():
    vm=VM(); dma_off(vD1,1280,64); rowbase(AO_OFF); E(f"s_lshl_b32 s{sB}, s{sH}, 8")
    E(f"s_mul_i32 s{sD}, s{sC}, 5"); E(f"s_add_u32 s{sD}, s{sD}, s{sH}"); E(f"s_lshl_b32 s{sD}, s{sD}, 13"); E(f"s_add_u32 s{sD}, s{sD}, {AA_OFF}"); E(f"s_add_u32 s{sE}, s{sD}, 4096")
    def pre():
        xload(vm,"sc1")
        lanefield(97,0,31,4); E(f"s_lshl_b32 s{sT}, s{sC}, 7"); E(f"s_add_u32 s{sT}, s{sT}, {G_OFF}"); bload(1,"v96",97,WS,f"s{sT}"); vm.op('t')
        for u in range(8): bload(4,vr(64+4*u,4),vL16,WS,f"s{(sD,sE)[u>>2]}",(u%4)*1024,"sc1"); vm.op('t')
    run_stages(vm,s1_stages(4,4,1280,[(AWO,0),(AWO,128)]),pre)
    laneaddr(97,[(0,31,1280),(5,1,8)]); E(f"s_mul_i32 s{sA}, s{sC}, {32*1280}"); E(f"s_add_u32 s{sA}, s{sA}, s{sB}")
    nop(6); pack(0,0,32)
    for f in range(4): scale8(8*f,8*f,96,100)
    E(f"s_cmp_lt_u32 s{sR}, {RT0}"); E("s_cbranch_scc1 AO_C")
    for u in range(8): bstore(4,vr(4*u,4),vL16,WS,f"s{(sD,sE)[u>>2]}",(u%4)*1024,STF)
    drain_signal(f"s{sFl}"); ph(6); E("s_endpgm")
    L("AO_C")
    for f in range(4):
        add8(8*f,8*f,64+8*f,100)
        for q in range(4): bstore(2,vr(8*f+2*q,2),97,OUT,f"s{sA}",64*f+16*q)
    ph(6); E("s_endpgm")
import struct,math
def f2u(x): return struct.unpack("<I",struct.pack("<f",x))[0]
LOG2E=math.log2(math.e)
QSC=f2u(20**-0.5*LOG2E); BSC=f2u(192**-0.5*LOG2E)
```

```python
import sys
from base import *
import base
from gemm import *
from misc import *
from chain import *
kern=[]
def K(name,grid,lds):
    kern.append((name,grid,lds))
    E(f".globl {name}"); E(".p2align 8"); E(f".type {name},@function"); L(name)
    E(f"s_cmp_ge_u32 s2, {grid}"); E(f"s_cbranch_scc0 {name}_go"); E("s_endpgm"); L(name+"_go"); entry()
def emit():
    hdr=[f"; @launch kernel={n} grid=({g},1,1) block=(256,1,1) lds={l}" for n,g,l in kern]
    hdr+=['.amdgcn_target "amdgcn-amd-amdhsa--gfx950"',".text"]
    tail=['.section .rodata,"a"']
    for n,g,l in kern:
        tail+=[".p2align 6",f".amdhsa_kernel {n}",".amdhsa_next_free_vgpr 512",".amdhsa_next_free_sgpr 102",".amdhsa_accum_offset 256",
               ".amdhsa_group_segment_fixed_size 0",".amdhsa_kernarg_size 112",".amdhsa_user_sgpr_count 2",".amdhsa_user_sgpr_kernarg_segment_ptr 1",
               ".amdhsa_system_sgpr_workgroup_id_x 1",".end_amdhsa_kernel"]
    open(sys.argv[1] if len(sys.argv)>1 else f"cdna_kernels/{NAME}.s","w").write("\n".join(hdr+base.out+tail)+"\n")
def head_from(t):
    E(f"s_and_b32 s{sH}, s{t}, 7"); E(f"s_lshl_b32 s{sH}, s{sH}, 2"); E(f"s_bfe_u32 s{sT}, s{t}, 0x20003"); E(f"s_add_u32 s{sH}, s{sH}, s{sT}")
if __name__=="__main__":
    K("prep_kernel",256,122880)
    init_part(); common_setup(); E(f"s_mov_b32 s{sTask}, s2")
    L("T_LOOP")
    E(f"s_cmp_lt_u32 s{sTask}, 1024"); E("s_cbranch_scc0 T_2")
    if os.environ.get("MAP")=="1":
        E(f"s_and_b32 s{sH}, s{sTask}, 7"); E(f"s_lshl_b32 s{sH}, s{sH}, 2"); E(f"s_lshr_b32 s{sT}, s{sTask}, 8"); E(f"s_add_u32 s{sH}, s{sH}, s{sT}"); E(f"s_bfe_u32 s{sR}, s{sTask}, 0x40003"); E(f"s_bitcmp1_b32 s{sTask}, 7")
    else: head_from(sTask); E(f"s_lshr_b32 s{sR}, s{sTask}, 6"); E(f"s_bitcmp1_b32 s{sTask}, 5")
    pass; E("s_cbranch_scc1 T_VO")
    task_qk(); E("s_branch T_NEXT")
    L("T_VO"); task_vo()
    L("T_NEXT"); gout(); E(f"s_add_u32 s{sTask}, s{sTask}, 256"); E("s_branch T_LOOP")
    L("T_2"); E(f"s_cmp_lt_u32 s{sTask}, 1152"); E("s_cbranch_scc0 T_3")
    E(f"s_and_b32 s{sH}, s{sTask}, 7"); E(f"s_bfe_u32 s{sR}, s{sTask}, 0x40003"); task_a(); E("s_branch T_NEXT")
    L("T_3"); E(f"s_cmp_lt_u32 s{sTask}, 1312"); E("s_cbranch_scc1 T_B"); E("s_endpgm")
    L("T_B"); head_from(sTask); E(f"s_sub_u32 s{sR}, s{sTask}, 1152"); E(f"s_lshr_b32 s{sR}, s{sR}, 5"); task_b(); E("s_branch T_NEXT")
    K("chain_kernel",256,163840)
    E(f"s_and_b32 s{sX}, s2, 7"); E(f"s_lshr_b32 s{sI}, s2, 3"); E(f"s_cmp_lt_u32 s{sX}, 4"); E("s_cbranch_scc1 CH_1")
    E(f"s_sub_u32 s{sH}, s{sX}, 4"); E(f"s_lshl_b32 s{sH}, s{sH}, 3"); E(f"s_lshr_b32 s{sT}, s{sI}, 2"); E(f"s_add_u32 s{sH}, s{sH}, s{sT}"); E(f"s_and_b32 s{sR}, s{sI}, 3")
    attention(); L("CH_EX0"); E("s_endpgm")
    L("CH_EXIT"); stamp_out(); E("s_endpgm")
    L("CH_1"); E(f"s_cmp_lt_u32 s{sI}, 28"); E("s_cbranch_scc0 CH_EX0"); E(f"s_cmp_lt_u32 s{sI}, 8"); E("s_cbranch_scc0 CH_V")
    role_s(); L("CH_V"); role_v()
    K("ao_kernel",32,122880)
    common_setup(); E(f"s_and_b32 s{sH}, s2, 1"); E(f"s_lshr_b32 s{sR}, s2, 1"); task_ao(); E("s_endpgm")
    K("fin_kernel",320,0)
    E(f"s_and_b32 s{sR}, s2, 63"); E(f"s_lshr_b32 s{sH}, s2, 6"); final(); E("s_endpgm")
    emit()
```

```python
from base import *
from gemm import *
def init_part():
    E("s_lshl_b32 s70, s2, 12"); E("v_lshlrev_b32 v1, 4, v0"); E("v_add_u32 v1, s70, v1")
    for i in range(4): E(f"v_mov_b32 v{4+i}, -1")
    n=SENT_END-SENT_BEG; full=n>>20; rem=n-(full<<20)
    for it in range(full):
        E(f"s_mov_b32 s{sT}, {SENT_BEG+(it<<20)}"); bstore(4,"v[4:7]",1,WS,f"s{sT}")
    E(f"v_cmp_gt_u32 vcc, {rem}, v1"); E(f"v_mov_b32 v2, {BIG}"); E(f"s_mov_b32 s{sT}, {SENT_BEG+(full<<20)}"); E("v_cndmask_b32 v2, v2, v1, vcc")
    bstore(4,"v[4:7]",2,WS,f"s{sT}")
    E("v_cmp_gt_u32 vcc, 0x8000, v1"); E(f"v_mov_b32 v2, {BIG}")
    for i in range(4): E(f"v_mov_b32 v{8+i}, 0")
    E("v_cndmask_b32 v2, v2, v1, vcc"); E(f"s_mov_b32 s{sT}, {FL_OFF}"); bstore(4,"v[8:11]",2,WS,f"s{sT}")
    E("v_lshrrev_b32 v2, 4, v1"); E("v_and_b32 v3, 7, v2"); E("v_mul_u32_u24 v3, 1280, v3"); E("v_lshrrev_b32 v2, 3, v2"); E("v_lshl_add_u32 v3, v2, 4, v3")
    E("v_cmp_gt_u32 vcc, 10240, v1"); E(f"v_mov_b32 v2, {BIG}"); E("s_nop 0"); E("v_cndmask_b32 v3, v2, v3, vcc"); E("v_cndmask_b32 v2, v2, v1, vcc")
    bload(4,"v[12:15]",3,MEM0,"0")
    laneaddr(16,[(0,31,8)]); lanefield(17,5,1,1280,16)
    E("s_lshl_b32 s70, s2, 2"); E(f"s_add_u32 s70, s70, s{sW}"); E(f"s_mul_i32 s{sT}, s70, 2560")
    for i in range(5): bload(2,vr(20+2*i,2),17,X,f"s{sT}",256*i); bload(2,vr(30+2*i,2),16,GW,"0",256*i)
    WM=int(os.environ.get("WM","0"))
    E("v_lshlrev_b32 v50, 2, v1"); E(f"v_add_u32 v51, {1<<22}, v50")
    if WM:
        for j,srd in enumerate((WQ,WK,WV,WO)): bload(1,f"v{52+2*j}",50,srd,"0"); bload(1,f"v{53+2*j}",51,srd,"0")
    E(f"s_waitcnt vmcnt({10+8*WM})")
    for i in range(4): E(f"v_min_u32 v{12+i}, -2, v{12+i}")
    for x in range(4): E(f"s_mov_b32 s{sT}, {M_OFF+x*10240}"); bstore(4,"v[12:15]",2,WS,f"s{sT}")
    laneaddr(45,[(1,15,512),(5,1,16),(0,1,8)]); E("s_lshr_b32 s71, s70, 4"); E("s_mul_i32 s71, s71, 40960"); E(f"s_and_b32 s{sT}, s70, 15"); E(f"s_lshl_b32 s{sT}, s{sT}, 5"); E(f"s_add_u32 s71, s71, s{sT}")
    E(f"s_waitcnt vmcnt({4+8*WM})"); E("v_mov_b32 v40, 0")
    for i in range(5): E(f"s_add_u32 s{sT}, s71, {XF_OFF+8192*i}"); bstore(2,vr(20+2*i,2),45,WS,f"s{sT}")
    for i in range(10):
        E(f"v_lshlrev_b32 v41, 16, v{20+i}"); E(f"v_lshlrev_b32 v42, 16, v{30+i}"); E(f"v_and_b32 v43, 0xffff0000, v{20+i}"); E(f"v_and_b32 v44, 0xffff0000, v{30+i}")
        E("v_mul_f32 v41, v41, v42"); E("v_mul_f32 v43, v43, v44"); cvt(41,41,43)
        E("v_lshlrev_b32 v42, 16, v41"); E("v_and_b32 v41, 0xffff0000, v41"); E("v_add_f32 v40, v40, v42"); E("v_add_f32 v40, v40, v41")
    for o in (0x041F,0x081F,0x101F,0x201F,0x401F):
        E(f"ds_swizzle_b32 v41, v40 offset:{o}"); E("s_waitcnt lgkmcnt(0)"); E("v_add_f32 v40, v40, v41")
    cvt(40,40,40); E("v_lshlrev_b32 v40, 16, v40"); E(f"v_mul_f32 v40, 0x{f2u(-LOG2E):x}, v40"); E("v_exp_f32 v40, v40"); E("s_nop 0")
    E("v_add_f32 v40, 1.0, v40"); E("v_rcp_f32 v40, v40"); E("s_nop 0"); cvt(40,40,40); E("v_lshlrev_b32 v40, 16, v40")
    lanefield(41,5,1,4); E("s_lshl_b32 s70, s70, 3"); E(f"s_add_u32 s70, s70, {G_OFF}")
    bstore(1,"v40",41,WS,"s70"); E("s_waitcnt vmcnt(0)")
def attention(ldf="",stf=""):
    vQ=0; vC=32; vO=96; vS=160; vK=192; vP=224; vA=250; vM=240
    E(f"s_lshl_b32 s{sA}, s{sH}, 17"); E(f"s_add_u32 s{sA}, s{sA}, {AQ_OFF}")
    E(f"s_lshl_b32 s{sC}, s{sR}, 2"); E(f"s_add_u32 s{sC}, s{sC}, s{sW}"); E(f"s_lshl_b32 s{sT}, s{sC}, 13"); E(f"s_add_u32 s{sT}, s{sT}, s{sA}")
    E(f"v_lshlrev_b32 v{vA}, 4, v255")
    for i in range(8):
        if i==4: E(f"s_add_u32 s{sT}, s{sT}, 4096")
        bload(4,vr(vQ+4*i,4),vA,WS,f"s{sT}",(i%4)*1024,ldf)
    E(f"s_add_u32 s{sB}, s{sA}, {AQ_SZ}"); E(f"s_add_u32 s{sB2}, s{sB}, {62*2048}")
    for i in range(4): bload(4,vr(vK+4*i,4),vA,WS,f"s{sB}",i*1024,ldf)
    for i in range(4): E(f"v_mov_b32 v{vM+i}, 0xff800000")
    for i in range(16): E(f"v_mov_b32 v{vS+16+i}, 0xff800000")
    def p1(cur,nxt):
        E(f"s_add_u32 s{sB}, s{sB}, 4096"); E(f"s_min_u32 s{sT}, s{sB}, s{sB2}")
        for i in range(4): bload(4,vr(nxt+4*i,4),vA,WS,f"s{sT}",i*1024,ldf)
        E("s_waitcnt vmcnt(4)")
        for n in range(8):
            kb,q=n>>2,n&3; d=vS+16*(n&1); p=vS+16*((n+1)&1); pq=(n-1)&3
            mfma32(d,vr(cur+8*kb,4),vr(vQ+8*q,4),"0")
            E("s_nop 7"); E("s_nop 2")
            for j in range(4): E(f"v_max3_f32 v{vM+pq}, v{vM+pq}, v{p+2*j}, v{p+2*j+1}")
            mfma32(d,vr(cur+8*kb+4,4),vr(vQ+8*q+4,4))
            for j in range(4,8): E(f"v_max3_f32 v{vM+pq}, v{vM+pq}, v{p+2*j}, v{p+2*j+1}")
    E(f"s_mov_b32 s{sE}, 16"); L("AT_P1"); p1(vK,vK+16); p1(vK+16,vK)
    E(f"s_sub_u32 s{sE}, s{sE}, 1"); E(f"s_cmp_lg_u32 s{sE}, 0"); E("s_cbranch_scc1 AT_P1")
    nop(12)
    for j in range(8): E(f"v_max3_f32 v{vM+3}, v{vM+3}, v{vS+16+2*j}, v{vS+16+2*j+1}")
    E(f"s_add_u32 s{sB}, s{sA}, {AQ_SZ}"); E(f"s_add_u32 s{sB2}, s{sB}, {63*2048}")
    def ld2(r,so):
        E(f"s_add_u32 s{sD}, {so}, {AQ_SZ}")
        for i in range(2): bload(4,vr(r+4*i,4),vA,WS,so,i*1024,ldf)
        for i in range(2): bload(4,vr(r+8+4*i,4),vA,WS,f"s{sD}",i*1024,ldf)
    E("s_waitcnt vmcnt(0)"); ld2(vK,f"s{sB}")
    for q in range(4):
        E(f"v_mov_b32 v{vM+4}, v{vM+q}"); nop(2); E(f"v_permlane32_swap_b32 v{vM+q}, v{vM+4}"); E(f"v_max_f32 v{vM+q}, v{vM+q}, v{vM+4}")
        for j in range(16): E(f"v_sub_f32 v{vC+16*q+j}, 0, v{vM+q}"); E(f"v_mov_b32 v{vO+16*q+j}, 0")
    E("s_waitcnt vmcnt(0)")
    mfma32(vS,vr(vK,4),vr(vQ,4),vr(vC,16)); mfma32(vS,vr(vK+4,4),vr(vQ+4,4)); nop(8)
    def p2(cur,nxt):
        E(f"s_add_u32 s{sB}, s{sB}, 2048"); E(f"s_min_u32 s{sT}, s{sB}, s{sB2}"); ld2(nxt,f"s{sT}")
        for q in range(4):
            s=vS+16*(q&1); d=vS+16*((q+1)&1); nq=(q+1)&3; k=cur if q<3 else nxt; P=vP+8*(q&1)
            if q==3: E("s_waitcnt vmcnt(0)")
            mfma32(d,vr(k,4),vr(vQ+8*nq,4),vr(vC+16*nq,16))
            for j in range(4): E(f"v_exp_f32 v{s+j}, v{s+j}")
            mfma32(d,vr(k+4,4),vr(vQ+8*nq+4,4))
            for j in range(4,9): E(f"v_exp_f32 v{s+j}, v{s+j}")
            pack(P,s,4)
            for j in range(9,11): E(f"v_exp_f32 v{s+j}, v{s+j}")
            mfma32(vO+16*q,vr(cur+8,4),vr(P,4))
            for j in range(11,16): E(f"v_exp_f32 v{s+j}, v{s+j}")
            E("s_nop 0"); pack(P+4,s+8,4); nop(2)
            mfma32(vO+16*q,vr(cur+12,4),vr(P+4,4))
    E(f"s_mov_b32 s{sE}, 32"); L("AT_P2"); p2(vK,vK+16); p2(vK+16,vK)
    E(f"s_sub_u32 s{sE}, s{sE}, 1"); E(f"s_cmp_lg_u32 s{sE}, 0"); E("s_cbranch_scc1 AT_P2")
    E(f"s_mul_i32 s{sT}, s{sH}, 5"); E(f"v_lshrrev_b32 v{vA}, 5, v255"); E(f"v_add_u32 v{vA}, s{sT}, v{vA}"); E(f"v_and_b32 v{vA+1}, 1, v{vA}"); E(f"v_lshrrev_b32 v{vA}, 1, v{vA}"); E(f"v_lshlrev_b32 v{vA}, 9, v{vA}")
    E(f"v_lshl_add_u32 v{vA}, v{vA+1}, 3, v{vA}"); lanefield(vA,0,31,16,vA); E("v_cmp_gt_u32 vcc, 32, v255"); E(f"v_mov_b32 v{vA+1}, {BIG}"); E("s_nop 0"); E(f"v_cndmask_b32 v{vA+1}, v{vA+1}, v{vA}, vcc")
    E(f"s_mul_i32 s{sD}, s{sC}, {128*1280}")
    nop(8)
    for q in range(4):
        o=vO+16*q
        E(f"v_mov_b32 v{vM}, v{o+8}"); E(f"v_mov_b32 v{vM+1}, v{o+8}"); nop(2); E(f"v_permlane32_swap_b32 v{vM}, v{vM+1}"); E(f"v_rcp_f32 v{vM+1}, v{vM+1}"); E("s_nop 0")
        for j in range(12): E(f"v_mul_f32 v{o+j}, v{o+j}, v{vM+1}")
        pack(o,o,6); E(f"s_add_u32 s{sT}, s{sD}, {AO_OFF+q*32*1280}")
        bstore(2,vr(o,2),vA,WS,f"s{sT}",0,stf); bstore(2,vr(o+2,2),vA,WS,f"s{sT}",512,stf); bstore(2,vr(o+4,2),vA+1,WS,f"s{sT}",1024,stf)
def final(late,wait):
    vZ,vZm,vPp,vPm,vO=240,241,242,244,246
    laneaddr(vZ,[(3,3,20480),(5,1,128),(0,7,16)]); laneaddr(vZm,[(3,3,20480),(5,1,640),(0,7,16)],512)
    E(f"v_lshlrev_b32 v{vPp}, 4, v255"); laneaddr(vPm,[(5,1,2560),(0,31,16)],2048); E(f"v_add_u32 v{vPp+1}, 40960, v{vPp}"); E(f"v_add_u32 v{vPm+1}, 40960, v{vPm}")
    E(f"s_lshl_b32 s{sC}, s{sH}, 2"); E(f"s_add_u32 s{sC}, s{sC}, s{sW}")
    E(f"s_mul_i32 s{sA}, s{sR}, {Z_S}"); E(f"s_mul_i32 s{sT}, s{sC}, {4*20480}"); E(f"s_add_u32 s{sA}, s{sA}, s{sT}")
    E(f"s_mul_i32 s{sL}, s{sW}, 20480"); E(f"s_mul_i32 s{sB}, s{sR}, {32*2560}"); E(f"s_add_u32 s{sB}, s{sB}, s{sL}"); E(f"s_add_u32 s{sB}, s{sB}, {PX_OFF}")
    E(f"s_mul_i32 s{sD}, s{sR}, 20"); E(f"s_add_u32 s{sD}, s{sD}, s{sC}"); E(f"s_lshl_b32 s{sD}, s{sD}, 11"); E(f"s_add_u32 s{sD}, s{sD}, {AA_OFF}")
    vm=VM()
    def zv():
        for p in range(16):
            if p%3==0: E(f"s_add_u32 s{sT}, s{sA}, {p*1280}")
            for i in range(4): bload(4,ar(16*p+4*i,4),vZ,WS,f"s{sT}",(p%3)*1280+(i>>1)*640+(i&1)*256,"sc1"); vm.op(('z',p))
    lanefield(vO,0,31,4); E(f"s_lshl_b32 s{sT}, s{sR}, 7"); E(f"s_add_u32 s{sT}, s{sT}, {G_OFF}"); bload(1,"v56",vO,WS,f"s{sT}")
    if late:
        for u in range(2): bload(4,vr(48+4*u,4),vPp,WS,f"s{sD}",1024*u,"sc1")
        zv(); vm.q=[]
    wait(); E("s_barrier")
    for j in range(20):
        if j%4==0: E(f"s_add_u32 m0, s{sL}, {j*1024}"); E(f"s_add_u32 s{sT}, s{sB}, {j*1024}")
        E(f"buffer_load_dwordx4 v{vPp},{S(WS)},s{sT} offen offset:{(j%4)*1024} sc1 lds"); vm.op('p')
    for p in range(16):
        if p%3==0: E(f"s_add_u32 s{sT}, s{sA}, {p*1280}")
        bload(4,vr(64+4*p,4),vZm,WS,f"s{sT}",(p%3)*1280,"sc1"); vm.op(('m',p))
    if not late: zv()
    vm.wait('p'); E("s_barrier")
    seq=[(p,4) for p in range(16)]; sv=[(p,i) for p in range(16) for i in range(4)]; seq=sv+seq if late else seq+sv
    def rd(g):
        p,i=seq[g]; E(f"ds_read_b128 {vr(128+4*(g%8),4)}, v{(vPp if i<4 else vPm)+(p>>3)} offset:{(p&7)*5120+((i>>1)*2560+(i&1)*1024 if i<4 else 0)}")
    for g in range(6): rd(g)
    for g,(p,i) in enumerate(seq):
        if g+6<80: rd(g+6)
        vm.wait(('m',p) if i==4 else ('z',p)); E(f"s_waitcnt lgkmcnt({min(6,79-g)})")
        mfma32(16*(g&1),vr(64+4*p,4) if i==4 else ar(16*p+4*i,4),vr(128+4*(g%8),4),"0" if g<2 else None)
    laneaddr(vO,[(0,31,1280),(5,1,8)])
    E(f"s_mul_i32 s{sA}, s{sR}, {32*1280}"); E(f"s_lshl_b32 s{sT}, s{sC}, 6"); E(f"s_add_u32 s{sA}, s{sA}, s{sT}")
    E("v_sub_f32 v57, 1.0, v56"); cvt(57,57,57); E("v_lshlrev_b32 v57, 16, v57"); nop(8)
    for j in range(16): E(f"v_add_f32 v{j}, v{j}, v{16+j}")
    pack(32,0,8); scale8(32,32,57,60)
    if late:
        add8(32,32,48,60)
        for q in range(4): bstore(2,vr(32+2*q,2),vO,OUT,f"s{sA}",16*q)
    else:
        for u in range(2): bstore(4,vr(32+4*u,4),vPp,WS,f"s{sD}",1024*u,"sc1")
```

```python
import sys
from main1 import *
sN=6
def flag(dst,base,idx): E(f"s_lshl_b32 s{dst}, s{idx}, 7"); E(f"s_add_u32 s{dst}, s{dst}, {FLG(base)}")
def acquire(): E("buffer_inv sc1"); E("s_waitcnt vmcnt(0)")
K("init_kernel",256,0); init_part(); E("s_endpgm")
K("main_kernel",256,163840)
E(f"s_and_b32 s{sX}, s2, 7"); E(f"s_lshr_b32 s{sI}, s2, 3"); E(f"s_mov_b32 s{sSpin}, 0x80000"); E(f"s_mov_b32 s{sTask}, s2"); ph(0)
E(f"s_cmp_lt_u32 s{sX}, 4"); E("s_cbranch_scc0 WORKER")
EX[0]="EX0"
E(f"s_cmp_lt_u32 s{sI}, 28"); E("s_cbranch_scc0 BT0"); xcc_check(); E(f"s_cmp_lt_u32 s{sI}, 8"); E("s_cbranch_scc0 BT0")
role_s(); L("EX0"); E("s_endpgm")
L("BT0"); common_setup(); E(f"s_sub_u32 s{sN}, s{sI}, 8"); flag(sFl,F_B,sX)
L("BT1"); E(f"s_and_b32 s{sH}, s{sN}, 7"); E(f"s_lshl_b32 s{sT}, s{sX}, 3"); E(f"s_add_u32 s{sH}, s{sH}, s{sT}"); E(f"s_lshr_b32 s{sR}, s{sN}, 3")
task_b(); drain_signal(f"s{sFl}")
E(f"s_add_u32 s{sN}, s{sN}, 16"); E(f"s_cmp_lt_u32 s{sN}, 24"); E("s_cbranch_scc1 BT2"); E(f"s_cmp_lt_u32 s{sN}, 40"); E("s_cbranch_scc1 BT1")
L("BT2"); ph(1); E(f"s_cmp_lt_u32 s{sI}, 28"); E("s_cbranch_scc0 SPARE")
E(f"s_lshl_b32 s{sT}, s{sW}, 6"); E(f"v_add_u32 v0, s{sT}, v255"); E("s_barrier")
role_v()
def div5(): E(f"s_mul_i32 s{sR}, s{sN}, 52429"); E(f"s_lshr_b32 s{sR}, s{sR}, 18"); E(f"s_mul_i32 s{sT}, s{sR}, 5"); E(f"s_sub_u32 s{sH}, s{sN}, s{sT}")
def fbflag(): E(f"s_mul_i32 s{sT}, s{sT}, 5"); E(f"s_add_u32 s{sT}, s{sT}, s{sH}"); flag(sFl,F_FB,sT)
L("SPARE"); E(f"s_lshl_b32 s{sN}, s{sX}, 2"); E(f"s_add_u32 s{sN}, s{sN}, s{sI}"); E(f"s_sub_u32 s{sN}, s{sN}, 28")
L("SP1"); div5(); E(f"s_add_u32 s{sFl2}, s{sR}, 2"); E(f"s_mov_b32 s{sFl}, {FLG(F_PR)}")
final(0,lambda:(fwait(f"s{sFl}",f"s{sFl2}",0,8),ph(7))); E(f"s_lshr_b32 s{sT}, s{sR}, 2"); fbflag(); drain_signal(f"s{sFl}"); ph(8)
E(f"s_add_u32 s{sN}, s{sN}, 16"); E(f"s_cmp_lt_u32 s{sN}, {20*RT0}"); E("s_cbranch_scc1 SP1"); E("s_endpgm")
L("WORKER"); EX[0]="EX1"
common_setup(); E(f"s_sub_u32 s{sX}, s{sX}, 4"); E(f"s_and_b32 s7, s{sI}, 15")
E(f"s_lshl_b32 s{sH}, s{sX}, 3"); E(f"s_and_b32 s{sT}, s{sI}, 7"); E(f"s_add_u32 s{sH}, s{sH}, s{sT}"); E(f"s_bfe_u32 s{sR}, s{sI}, 0x10003")
E(f"s_lshl_b32 s{sT}, s{sX}, 4"); flag(sFl,F_QK,sT)
E(f"s_cmp_lt_u32 s{sI}, 16"); E("s_cbranch_scc0 W_VO")
loop_task(0); E("s_branch W_A")
L("W_VO"); E(f"s_add_u32 s{sFl}, s{sFl}, {128*(F_VO-F_QK)}"); loop_task(1); E("s_branch W_A")
L("EX1"); E("s_endpgm")
L("W_A"); ph(1)
E(f"s_lshl_b32 s{sH}, s{sX}, 1"); E(f"s_and_b32 s{sT}, s{sI}, 1"); E(f"s_add_u32 s{sH}, s{sH}, s{sT}"); E(f"s_lshr_b32 s{sR}, s{sI}, 1")
task_a(); flag(sFl,F_A,sH); drain_signal(f"s{sFl}"); ph(2)
E(f"s_lshl_b32 s{sH}, s{sX}, 3"); E(f"s_lshr_b32 s{sT}, s{sI}, 2"); E(f"s_add_u32 s{sH}, s{sH}, s{sT}"); E(f"s_and_b32 s{sR}, s{sI}, 3")
E(f"s_lshr_b32 s{sT}, s{sH}, 2"); flag(sFl,F_A,sT); fwait(f"s{sFl}",16,0); acquire(); ph(3)
attention("","sc1"); common_setup(); flag(sFl,F_AT,sR); drain_signal(f"s{sFl}"); ph(4)
E(f"s_lshl_b32 s{sN}, s{sI}, 2"); E(f"s_add_u32 s{sN}, s{sN}, s{sX}"); E(f"s_cmp_lt_u32 s{sN}, 80"); E("s_cbranch_scc0 FIN0")
div5(); E(f"s_lshr_b32 s{sT}, s{sR}, 2"); flag(sFl,F_AT,sT); fwait(f"s{sFl}",32,0); E(f"s_mov_b32 s{sT}, s{sR}"); fbflag()
E(f"s_cmp_lt_u32 s{sR}, {RT0}"); E(f"s_cselect_b32 s{sFl2}, 4, 0"); fwait(f"s{sFl}",f"s{sFl2}",0); ph(5)
task_ao()
L("FIN0"); E(f"s_add_u32 s{sN}, s{sN}, {20*RT0-80}"); E(f"s_cmp_lt_u32 s{sN}, 320"); E("s_cbranch_scc0 EX2"); EX[0]="EX2"
div5(); E(f"s_lshr_b32 s{sT}, s{sR}, 2"); fbflag(); fwait(f"s{sFl}",1,0,4); flag(sFl,F_END,sH); E(f"s_add_u32 s{sFl2}, s{sR}, 2")
E(f"s_cmp_lt_u32 s{sR}, 62"); E(f"s_cselect_b32 s{sFl}, {FLG(F_PR)}, s{sFl}"); E(f"s_cselect_b32 s{sFl2}, s{sFl2}, 48")
final(1,lambda:(fwait(f"s{sFl}",f"s{sFl2}",0,2),ph(7))); ph(8); L("EX2"); E("s_endpgm")
emit()
```

```python
NAME="gated_mix__softmax_full_mha__memory_aug_recurrent_mem_tr__prompt"
out=[]
def E(s): out.append(s)
def L(s): out.append(s+":")
def vr(b,n=1,k='v'): return f"{k}{b}" if n==1 else f"{k}[{b}:{b+n-1}]"
def ar(b,n=1): return vr(b,n,'a')
def sr(b,n=1): return vr(b,n,'s')
def nop(n):
    while n>0:
        k=min(n,16); E(f"s_nop {k-1}"); n-=k
import os
ZJ=20480+int(os.environ.get('ZP',256)); BWS=81920+int(os.environ.get('BP',1280))
Z_OFF=0;                 Z_S=80*ZJ
BW_OFF=Z_OFF+64*Z_S
KX_OFF=BW_OFF+4*80*BWS
QX_OFF=KX_OFF+64*32*12288
SX_OFF=QX_OFF+64*32*12288
PX_OFF=SX_OFF+64*32*4096
AQ_OFF=PX_OFF+64*32*2560
AQ_SZ=32*64*2048
AO_OFF=AQ_OFF+3*AQ_SZ
AA_OFF=AO_OFF+2048*1280
OB_OFF=AA_OFF+64*20*2048+3*327680
XF_OFF=OB_OFF+64*327680
G_OFF=XF_OFF+2048*1280
RT0=14
M_OFF=G_OFF+8192
PM_OFF=M_OFF+65*40960
XB_OFF=PM_OFF+64*20480
ID_OFF=XB_OFF+4*327680
SENT_BEG=M_OFF+40960; SENT_END=ID_OFF+4096
FL_OFF=SENT_END
WS_END=FL_OFF+32768
def FLG(i): return FL_OFF+128*i
F_B=0; F_A=4; F_AT=12; F_SE=16; F_QK=32; F_VO=96; F_PR=160; F_END=161; F_FB=168
assert WS_END<=1<<28
WS,X,WQKV,AWO,WQ,WK,WV,WO,OUT,MEM0,GW=[8+4*i for i in range(11)]
def S(b): return sr(b,4)
sW=56; sT=57; sL=58; sB=59; sB2=60; sA=61; sH=62; sR=63; sTask=64; sPh=65; sC=66; sD=67; sE=68; sF=69
BIG=0x40000000
class VM:
    def __init__(s): s.q=[]
    def op(s,tag): s.q.append(tag)
    def wait(s,tag):
        idx=[i for i,t in enumerate(s.q) if t==tag]
        if not idx: return
        n=len(s.q)-1-idx[-1]
        E(f"s_waitcnt vmcnt({min(n,63)})"); s.q=s.q[idx[-1]+1:]
    def all(s): E("s_waitcnt vmcnt(0)"); s.q=[]
def entry():
    E("s_load_dwordx16 s[72:87], s[0:1], 0")
    E("s_load_dwordx8 s[88:95], s[0:1], 64")
    E("s_load_dwordx4 s[96:99], s[0:1], 96")
    E("v_lshrrev_b32 v1, 6, v0"); E("v_and_b32 v255, 63, v0"); E("s_nop 0"); E(f"v_readfirstlane_b32 s{sW}, v1")
    E("s_waitcnt lgkmcnt(0)")
    for srd,p,n in [(WS,98,1<<28),(X,72,2621440),(WQKV,74,2457600),(AWO,76,819200),(WQ,82,7864320),(WK,84,7864320),
                    (WV,86,7864320),(WO,88,7864320),(OUT,94,2621440),(MEM0,80,10240),(GW,92,1280)]:
        E(f"s_mov_b32 s{srd}, s{p}"); E(f"s_and_b32 s{srd+1}, s{p+1}, 0xffff"); E(f"s_mov_b32 s{srd+2}, {n}"); E(f"s_mov_b32 s{srd+3}, 0x20000")
    E("s_and_b32 s97, s97, 0xffff"); E("s_mov_b32 s98, 256"); E("s_mov_b32 s99, 0x20000")
DBG=96
def lanefield(dst,shift,mask,mul,add=None):
    t=254 if add is not None else dst
    if shift: E(f"v_lshrrev_b32 v{t}, {shift}, v255"); E(f"v_and_b32 v{t}, {mask}, v{t}")
    else: E(f"v_and_b32 v{t}, {mask}, v255")
    if mul!=1: E(f"v_mul_u32_u24 v{t}, {mul}, v{t}")
    if add is not None: E(f"v_add_u32 v{dst}, v{t}, v{add}")
def laneaddr(dst,terms,const=0):
    first=True
    for (sh,m,mul) in terms:
        lanefield(dst,sh,m,mul,None if first else dst); first=False
    if const: E(f"v_add_u32 v{dst}, {const}, v{dst}")
def cvt(d,a,b,mod=""):
    if mod=="abs": E(f"v_cvt_pk_bf16_f32 v{d}, |v{a}|, |v{b}|")
    else: E(f"v_cvt_pk_bf16_f32 v{d}, v{a}, v{b}")
def mfma32(d,a,b,c=None):
    c=vr(d,16) if c is None else c
    E(f"v_mfma_f32_32x32x16_bf16 {vr(d,16)},{a},{b},{c}")
def mfma16(d,a,b,c=None):
    c=vr(d,4) if c is None else c
    E(f"v_mfma_f32_16x16x32_bf16 {vr(d,4)},{a},{b},{c}")
def bload(n,dst,voff,srd,soff,imm=0,fl=""):
    nm={1:"dword",2:"dwordx2",3:"dwordx3",4:"dwordx4"}[n]
    E(f"buffer_load_{nm} {dst},v{voff},{S(srd)},{soff} offen"+(f" offset:{imm}" if imm else "")+(" "+fl if fl else ""))
def bstore(n,src,voff,srd,soff,imm=0,fl=""):
    nm={1:"dword",2:"dwordx2",3:"dwordx3",4:"dwordx4"}[n]
    E(f"buffer_store_{nm} {src},v{voff},{S(srd)},{soff} offen"+(f" offset:{imm}" if imm else "")+(" "+fl if fl else ""))
sSpin=71
EX=["CH_EXIT"]; uid=[0]
def fwait(soff,cnt,t,slp=4,srd=WS):
    uid[0]+=1; lb=f"FW{uid[0]}"
    if srd==WS: E(f"v_mov_b32 v{t}, 0")
    E(f"s_branch {lb}b"); L(lb); E(f"s_sleep {slp}"); L(lb+"b")
    bload(1,f"v{t+1}",t,srd,soff,0,"sc1"); E(f"s_sub_u32 s{sSpin}, s{sSpin}, 1"); E(f"s_cbranch_scc1 {EX[0]}"); E("s_waitcnt vmcnt(0)")
    E(f"v_cmp_gt_u32 vcc, {cnt}, v{t+1}"); E(f"s_cbranch_vccnz {lb}")
import os
PH=os.environ.get("PH"); ONE=os.environ.get("ONE"); IFL='sc1' if ONE else ''
def ph(k,t=252):
    if PH:
        E("s_memrealtime s[94:95]"); E("s_lshl_b32 s3, s2, 6"); E(f"s_add_u32 s3, s3, {WS_END+(5<<20)+4*k}"); E(f"v_mov_b32 v{t}, 0"); E("s_waitcnt lgkmcnt(0)"); E(f"v_mov_b32 v{t+1}, s94"); bstore(1,f"v{t+1}",t,WS,"s3"); E("s_memtime s[94:95]"); E("s_add_u32 s3, s3, 16384"); E("s_waitcnt lgkmcnt(0)"); E(f"v_mov_b32 v{t+1}, s94"); bstore(1,f"v{t+1}",t,WS,"s3")
def gwait(t):
    if not ONE: return
    uid[0]+=1; lb=f"GW{uid[0]}"
    E(f"s_cmp_eq_u32 s{sW}, 0"); E(f"s_cbranch_scc0 {lb}"); E(f"v_mov_b32 v{t}, 128"); fwait("0",256,t,16,DBG); L(lb); E("s_barrier")
```

```python
from base import *
from gemm import *
sS=70; sG=89; sPr=90; sPo=91; sX=4; sI=5; sM=6; sP=7; sQ=100; sU=101
import os
DIAG=os.environ.get("DIAG")
TR_OFF=WS_END
def stamp(k):
    if DIAG: E(f"s_memrealtime s[{72+2*k}:{73+2*k}]")
def stamp_init():
    if DIAG:
        E("s_lshl_b32 s88, s2, 2"); E(f"s_add_u32 s88, s88, s{sW}"); E("s_lshl_b32 s88, s88, 11"); E(f"s_add_u32 s88, s88, {TR_OFF}"); stamp(7)
        for k in range(7): E(f"s_mov_b32 s{72+2*k}, 0")
def stamp_acc(n):
    if DIAG:
        E("s_waitcnt lgkmcnt(0)")
        for k in range(8): E(f"v_mov_b32 v{k}, s{72+2*k}")
        E("v_mov_b32 v8, 0"); bstore(4,"v[0:3]",8,WS,"s88"); bstore(4,"v[4:7]",8,WS,"s88",16); E("s_add_u32 s88, s88, 32")
def stamp_out(): pass
def umax(dst,regs):
    regs=list(regs); E(f"v_max3_u32 v{dst}, v{regs[0]}, v{regs[1]}, v{regs[2]}"); regs=regs[3:]
    while len(regs)>=2: E(f"v_max3_u32 v{dst}, v{dst}, v{regs[0]}, v{regs[1]}"); regs=regs[2:]
    if regs: E(f"v_max_u32 v{dst}, v{dst}, v{regs[0]}")
def poll(loads,regs,tmp):
    uid[0]+=1; lb=f"PL{uid[0]}"
    L(lb); loads(); E(f"s_sub_u32 s{sSpin}, s{sSpin}, 1"); E(f"s_cbranch_scc1 {EX[0]}"); E("s_waitcnt vmcnt(0)")
    if len(regs)>1: umax(tmp,regs)
    else: tmp=regs[0]
    E(f"v_cmp_eq_u32 vcc, -1, v{tmp}"); E(f"s_cbranch_vccnz {lb}")
def poll2(ld,A,B,n,nl,tmp,gap,use):
    uid[0]+=1; lb=f"PQ{uid[0]}"
    ld(A); gap and E(f"s_sleep {gap}"); L(lb)
    for cur,oth in ((A,B),(B,A)):
        ld(oth); E(f"s_waitcnt vmcnt({nl})"); umax(tmp,range(cur,cur+n)); E(f"v_cmp_eq_u32 vcc, -1, v{tmp}")
        if cur==A: E(f"s_cbranch_vccz {lb}a"); E(f"s_sub_u32 s{sSpin}, s{sSpin}, 1"); E(f"s_cbranch_scc1 {EX[0]}")
        else: E(f"s_cbranch_vccnz {lb}")
    use(B); E(f"s_branch {lb}e"); L(lb+"a"); use(A); L(lb+"e")
def pub(f,c=True):
    uid[0]+=1; a=f"PB{uid[0]}"
    if c: E(f"s_cmp_eq_u32 s{sF}, 0")
    E(f"s_cbranch_scc1 {a}s"); f(""); E(f"s_branch {a}e"); L(a+"s"); f("sc1"); L(a+"e")
def xcc_addr(t):
    E(f"s_getreg_b32 s{sT}, hwreg(HW_REG_XCC_ID, 0, 4)"); E(f"v_mov_b32 v{t}, s{sT}"); E(f"s_lshl_b32 s{sG}, s{sX}, 7"); E(f"s_add_u32 s{sG}, s{sG}, {ID_OFF}")
def xcc_store(t):
    xcc_addr(t); E(f"s_lshl_b32 s{sT}, s{sI}, 2"); E(f"v_mov_b32 v{t+1}, s{sT}"); bstore(1,f"v{t}",t+1,WS,f"s{sG}",0,"sc1")
def xcc_check(t,lane=255):
    xcc_addr(t); E(f"v_and_b32 v{t+1}, 31, v{lane}"); E(f"v_lshlrev_b32 v{t+1}, 2, v{t+1}")
    poll(lambda:bload(1,f"v{t+2}",t+1,WS,f"s{sG}",0,"sc1"),[t+2],t+3)
    E(f"v_cmp_ne_u32 vcc, v{t}, v{t+2}"); E("s_cmp_eq_u64 vcc, 0"); E(f"s_cselect_b32 s{sF}, 1, 0")
def mpoll(t,vA,vA2,vW,vW2,t2=None,gap=0):
    E(f"s_add_u32 s{sT}, s{sM}, 4096")
    def ld(t): bload(4,vr(t,4),vA,WS,f"s{sM}",0,"sc1"); bload(4,vr(t+4,4),vA,WS,f"s{sT}",0,"sc1"); bload(2,vr(t+8,2),vA2,WS,f"s{sM}",0,"sc1")
    def us(t): E(f"ds_write_b128 v{vW}, {vr(t,4)}"); E(f"ds_write_b128 v{vW}, {vr(t+4,4)} offset:4096"); E(f"ds_write_b64 v{vW2}, {vr(t+8,2)}")
    if t2 is None: poll(lambda:ld(t),range(t,t+10),t+10); us(t)
    else: poll2(ld,t,t2,10,3,t+10,gap,us)
    stamp(0); E("s_waitcnt lgkmcnt(0)"); E("s_barrier")
def maddr(vA,vA2,vW,vW2,vR,vI,MI):
    E(f"v_lshlrev_b32 v{vA}, 4, v0"); E(f"v_lshlrev_b32 v{vA2}, 3, v0"); E(f"v_add_u32 v{vA2}, 8192, v{vA2}")
    E(f"v_add_u32 v{vW}, {MI}, v{vA}"); E(f"v_add_u32 v{vW2}, {MI}, v{vA2}"); laneaddr(vR,[(0,63,16)],MI)
    lanefield(vI,3,1,0xAAAA); E(f"v_add_u32 v{vI}, 0x4444, v{vI}")
    E(f"s_mul_i32 s{sM}, s{sX}, 10240"); E(f"s_add_u32 s{sM}, s{sM}, {M_OFF}"); E(f"s_mov_b32 s{sS}, 0")
def smf(d,a,b,i): E(f"v_smfmac_f32_16x16x64_bf16 {vr(d,4)},{vr(a,4)},{b},v{i}")
def xred(v,t,op,modes):
    for m in modes:
        E(f"v_mov_b32 v{t}, v{v}"); nop(2); E(f"v_permlane{m}_swap_b32 v{v}, v{t}"); E(f"v_{op}_f32 v{v}, v{v}, v{t}")
def softmax(regs,mx,t,modes):
    r=list(regs); E(f"v_max3_f32 v{mx}, v{r[0]}, v{r[1]}, v{r[2]}"); k=r[3:]
    while len(k)>=2: E(f"v_max3_f32 v{mx}, v{mx}, v{k[0]}, v{k[1]}"); k=k[2:]
    if k: E(f"v_max_f32 v{mx}, v{mx}, v{k[0]}")
    xred(mx,t,"max",modes); E(f"v_mul_f32 v{mx}, s{sE}, v{mx}")
    for x in r: E(f"v_fma_f32 v{x}, v{x}, s{sE}, -v{mx}")
    for x in r: E(f"v_exp_f32 v{x}, v{x}")
    E(f"v_add_f32 v{mx}, v{r[0]}, v{r[1]}"); E(f"v_add_f32 v{t}, v{r[2]}, v{r[3]}")
    for j,x in enumerate(r[4:]): d=(mx,t)[j&1]; E(f"v_add_f32 v{d}, v{d}, v{x}")
    E(f"v_add_f32 v{mx}, v{mx}, v{t}"); xred(mx,t,"add",modes); E(f"v_rcp_f32 v{mx}, v{mx}"); E("s_nop 0")
    for x in r: E(f"v_mul_f32 v{x}, v{x}, v{mx}")
def flagchk(add,last,t):
    uid[0]+=1; lb=f"FC{uid[0]}"
    E(f"s_add_u32 s{sT}, s{sS}, {add}"); E(f"s_and_b32 s{sT}, s{sT}, {64+3}"); E(f"s_cbranch_scc1 {lb}")
    E(f"s_add_u32 s{sG}, s{sG}, 128"); fwait(f"s{sG}",8,t,1); L(lb)
def role_s(ldf=os.environ.get("VF","sc1_nt").replace("_"," "),stf="sc1"):
    MI=90112; QK=100352; KQ=108032
    vA,vA2,vW,vW2,vR,vI,vWL,vQW,vX,vK,vP1,vP2,vL,vSx,vMk=range(104,119)
    ACC=40; STG=64; PT=88
    stamp_init(); maddr(vA,vA2,vW,vW2,vR,vI,MI)
    E(f"s_lshl_b32 s{sH}, s{sX}, 3"); E(f"s_add_u32 s{sH}, s{sH}, s{sI}"); E(f"s_mov_b32 s{sE}, 0x{BSC:x}")
    E(f"v_lshlrev_b32 v{vL}, 4, v255"); E(f"s_mul_i32 s{sT}, s{sW}, {11*2048}"); E(f"v_add_u32 v{vWL}, s{sT}, v{vL}")
    laneaddr(vQW,[(0,15,240),(5,1,40),(4,1,8)],QK)
    E(f"s_and_b32 s{sA}, s{sW}, 1"); E(f"s_lshr_b32 s{sB}, s{sW}, 1"); E(f"s_mul_i32 s{sT}, s{sA}, {96*40}"); E(f"s_lshl_b32 s{sC}, s{sB}, 4"); E(f"s_add_u32 s{sT}, s{sT}, s{sC}"); E(f"v_add_u32 v{vQW}, s{sT}, v{vQW}")
    E(f"s_mul_i32 s{sQ}, s{sA}, {QX_OFF-KX_OFF}"); E(f"s_mul_i32 s{sT}, s{sH}, 12288"); E(f"s_add_u32 s{sQ}, s{sQ}, s{sT}"); E(f"s_add_u32 s{sQ}, s{sQ}, {KX_OFF}")
    E(f"s_mul_i32 s{sL}, s{sA}, 12288"); E(f"s_add_u32 s{sL}, s{sL}, {KQ}"); E(f"v_add_u32 v{vK}, s{sL}, v{vL}")
    E(f"s_mul_i32 s{sD}, s{sA}, {-11264&0xffffffff}"); E(f"s_add_u32 s{sD}, s{sD}, 24576")
    E(f"s_cmp_eq_u32 s{sW}, 1"); E("s_cbranch_scc1 S_A1")
    laneaddr(vX,[(5,1,640),(4,1,160),(2,3,40),(0,3,8)],QK)
    laneaddr(vP1,[(4,3,128),(0,7,16),(3,1,8)]); laneaddr(vP2,[(4,1,8),(0,7,16),(3,1,4)],512)
    E("v_cmp_gt_u32 vcc, 32, v255"); E(f"v_mov_b32 v{vSx}, {BIG}"); E(f"v_mov_b32 v1, 0xff800000"); E(f"v_cndmask_b32 v{vP2}, v{vP2}, v{vSx}, vcc"); E(f"v_cndmask_b32 v{vMk}, 0, v1, vcc")
    E(f"s_mul_i32 s{sP}, s{sH}, 640"); E(f"s_add_u32 s{sP}, s{sP}, {PM_OFF}"); E("s_branch S_A2")
    L("S_A1")
    laneaddr(vX,[(5,1,160),(2,3,40),(0,1,8)],QK+16); E(f"v_mov_b32 v{vP1}, v{vL}"); laneaddr(vP2,[(0,31,16),(5,1,8)],2048)
    E("v_cmp_gt_u32 vcc, 1, v255"); E(f"v_mov_b32 v{vSx}, {BIG}"); E(f"v_lshlrev_b32 v{vMk}, 7, v255"); E(f"v_cndmask_b32 v{vSx}, v{vSx}, v{vMk}, vcc"); E(f"v_mov_b32 v{vMk}, 1"); E(f"s_lshl_b32 s{sPr}, s{sX}, 7"); E(f"s_add_u32 s{sPr}, s{sPr}, {FLG(F_SE)}"); E(f"s_mul_i32 s{sP}, s{sH}, 2560"); E(f"s_add_u32 s{sP}, s{sP}, {PX_OFF}")
    L("S_A2")
    E(f"s_lshl_b32 s{sU}, s{sH}, 1"); E(f"s_add_u32 s{sU}, s{sU}, s{sA}"); E(f"s_lshl_b32 s{sU}, s{sU}, 10"); E(f"s_add_u32 s{sU}, s{sU}, {SX_OFF}")
    def kqdma():
        for a,n in ((0,4),(4096,4),(8192,4)):
            E(f"s_add_u32 m0, s{sL}, {a}"); E(f"s_add_u32 s{sT}, s{sQ}, {a}")
            for j in range(n): E(f"buffer_load_dwordx4 v{vL},{S(WS)},s{sT} offen offset:{j*1024} {ldf} lds")
        E(f"s_add_u32 m0, s{sL}, s{sD}"); E(f"s_add_u32 s{sQ}, s{sQ}, {32*12288}"); E(f"buffer_load_dwordx4 v{vL},{S(WS)},s{sU} offen {ldf} lds"); E(f"s_add_u32 s{sU}, s{sU}, {32*2048}")
    E(f"s_cmp_eq_u32 s{sB}, 0"); E(f"s_cselect_b32 s52, s{WQ}, s{WK}"); E(f"s_cselect_b32 s53, s{WQ+1}, s{WK+1}"); E("s_mov_b32 s54, 7864320"); E("s_mov_b32 s55, 0x20000")
    laneaddr(119,[(5,1,16*12288),(4,1,4*12288),(0,15,12)])
    E(f"s_mul_i32 s{sC}, s{sH}, 384"); E(f"s_mul_i32 s{sT}, s{sA}, 192"); E(f"s_add_u32 s{sC}, s{sC}, s{sT}")
    E(f"s_mov_b32 s{sA}, 0x05040100"); E(f"s_mov_b32 s{sB}, 0x07060302")
    place={}; na=nv=0; lds=[]
    for t in range(10):
        for n in range(6):
            if n==5 or (t,n)==(5,4): place[t,n]=('l',len(lds)); lds.append((t,n))
            elif na<32: place[t,n]=('a',8*na); na+=1
            else: place[t,n]=('v',120+8*nv); nv+=1
    assert nv==17 and len(lds)==11
    NP=10
    def wl(p):
        t,i=p>>3,p&7; row=64*t+32*(i>>2)+8*(i&1)+2*((i>>1)&1)
        for q in range(2): E(f"s_add_u32 s{sT}, s{sC}, {(row+q)*12288}"); bload(3,vr(8*(p%NP)+4*q,3),119,52,f"s{sT}",0,os.environ.get("SWF",""))
    for p in range(NP): wl(p)
    for p in range(80):
        t,i=p>>3,p&7; r=8*(p%NP); E(f"s_waitcnt vmcnt({2*min(NP-1,79-p)})")
        for n in range(6):
            k,b=place[t,n]; d={'a':96+n,'v':b+i,'l':80+8*(5-n)+i}[k]
            E(f"v_perm_b32 v{d}, v{r+4+(n>>1)}, v{r+(n>>1)}, s{(sA,sB)[n&1]}")
        for n in range(6):
            k,b=place[t,n]
            if k=='a': E(f"v_accvgpr_write_b32 a{b+i}, v{96+n}")
            if k=='l' and i&3==3: E(f"ds_write_b128 v{vWL}, {vr(80+8*(5-n)+i-3,4)} offset:{b*2048+(i>>2)*1024}")
        if p+NP<80: wl(p+NP)
    ph(2,72); E(f"v_lshrrev_b32 v76, 4, v{vL}"); E("v_and_b32 v72, 1, v76"); E("v_lshlrev_b32 v72, 7, v72"); ONE and fwait("0",128,72,6,DBG); xcc_check(72,76); ph(5,72); E(f"s_cmp_lt_u32 s{sW}, 2"); E("s_cbranch_scc1 S_LOOP")
    E(f"s_lshl_b32 s{sG}, s{sX}, 11"); E(f"s_add_u32 s{sG}, s{sG}, {FLG(F_QK)}"); fwait(f"s{sG}",8,72,1); ph(3,72); kqdma()
    def fr(j): return 4*j if j<7 else (PT+4*(j-7) if j<11 else 28)
    def stg(j):
        for q in range(2): E(f"ds_read_b128 {vr(STG+8*(j%3)+4*q,4)}, v{vWL} offset:{j*2048+q*1024}")
    L("S_LOOP")
    for j in range(3): stg(j)
    for i in range(24): E(f"v_mov_b32 v{ACC+i}, 0")
    if int(os.environ.get("DS","20")): E(f"s_sleep {os.environ.get('DS',20)}")
    GM=int(os.environ.get("GM","-1"))
    mpoll(PT,vA,vA2,vW,vW2,28 if GM>=0 else None,GM); stamp(1)
    q=[]
    def mr(ts):
        for t in ts: E(f"ds_read_b128 {vr(4*t,4)}, v{vR} offset:{t*1024}"); q.append(('m',t))
    mr(range(7))
    E(f"s_xor_b32 s{sL}, s{sL}, s{sD}") if False else None
    def need(tag):
        if tag in q:
            i=len(q)-1-q[::-1].index(tag); E(f"s_waitcnt lgkmcnt({min(15,len(q)-1-i)})"); del q[:i+1]
    TV=int(os.environ.get("TV","0"))
    seq=[(t,n) for t in range(7) for n in range(6)]+[(t,n) for p in range(3) for t in range(7,10) for n in (2*p,2*p+1)]
    def qk(n):
        a=ACC+4*n
        return [f"v_permlane32_swap_b32 v{a+i}, v{a+4+i}" for i in range(4)]+[f"v_add_f32 v{a+i}, v{a+i}, v{a+4+i}" for i in range(4)]+\
               [f"v_cvt_pk_bf16_f32 v{a+i}, v{a+2*i}, v{a+2*i+1}" for i in range(2)]+[f"ds_write_b64 v{vQW}, {vr(a,2)} offset:{n*40}"]
    fill=[]; refill={}
    for g,(t,n) in enumerate(seq):
        need(('m',t)); k,b=place[t,n]
        if k=='l': need(('w',b)); refill[g+2]=b+3
        smf(ACC+4*n,4*t,{'a':ar(b,8),'v':vr(b,8),'l':vr(STG+8*(b%3),8)}[k],vI)
        if g==16: E("s_waitcnt vmcnt(0)"); mr((7,8,9))
        if refill.get(g,99)<11: stg(refill[g]); q.extend([('w',refill[g])]*2)
        for j in {20:[7,8],26:[9,10],30:[0,1],34:[2,3],38:[4],41:[5],44:[6]}.get(g,[]):
            E(f"ds_read_b128 {vr(fr(j),4)}, v{vK} offset:{j*1024}"); q.append(('k',j))
        if TV==1 and g in (48,49,50): E("s_nop 1")
        if TV==1 and g==51: fill=qk(0)+qk(2)
        for x in fill[:2]: E(x); q.extend([('x',0)] if x.startswith("ds_") else [])
        fill=fill[2:]
    def qkwrite():
        stamp(2); E(f"ds_read_b128 {vr(fr(11),4)}, v{vK} offset:{11*1024}")
        for x in (fill+["s_nop 0"] if TV==1 else qk(0)+qk(2))+qk(4): E(x)
    E(f"s_cmp_eq_u32 s{sW}, 0"); E("s_cbranch_scc0 S_W1")
    qkwrite()
    for i in range(4): E(f"v_mov_b32 v{80+i}, v{vMk}")
    E("s_waitcnt lgkmcnt(0)"); E("s_barrier"); stamp(3)
    for v in range(6):
        for rd in range(2): E(f"ds_read_b64_tr_b16 {vr(ACC+4*v+2*rd,2)}, v{vX} offset:{v*1280+rd*320}")
    for v in range(6):
        E(f"s_waitcnt lgkmcnt({10-2*v})"); x=vr(ACC+4*v,4)
        mfma16(72,vr(fr(2*v),4),x,"0" if v==0 else None); mfma16(76,vr(fr(2*v+1),4),x,"0" if v==0 else None); mfma16(80,x,x)
    stamp(4); nop(7)
    D8=" row_ror:8 row_mask:0xf bank_mask:0xc"
    for i in range(4): E(f"v_mov_b32_dpp v{72+i}, v{76+i}"+D8)
    for i in range(2): E(f"v_mov_b32_dpp v{80+i}, v{82+i}"+D8)
    E("v_max3_f32 v84, v72, v73, v74"); E("v_max3_f32 v85, v75, v80, v81"); E("v_max_f32 v86, v84, v85"); E("v_max_f32 v84, v84, v85")
    def red(op):
        nop(2); E("v_permlane32_swap_b32 v84, v86"); E(f"v_{op}_f32 v85, v84, v86"); E(f"v_{op}_f32 v84, v84, v86")
        nop(2); E("v_permlane16_swap_b32 v84, v85"); E(f"v_{op}_f32 v84, v84, v85"); nop(2)
        E(f"v_{op}_f32_dpp v84, v84, v84 row_ror:8 row_mask:0xf bank_mask:0xf")
    red("max"); E(f"v_mul_f32 v84, s{sE}, v84")
    R6=(72,73,74,75,80,81)
    for x in R6: E(f"v_fma_f32 v{x}, v{x}, s{sE}, -v84")
    for x in R6: E(f"v_exp_f32 v{x}, v{x}")
    E("v_add_f32 v84, v72, v73"); E("v_add_f32 v85, v74, v75"); E("v_add_f32 v87, v80, v81"); E("v_add_f32 v84, v84, v85"); E("v_add_f32 v86, v84, v87"); E("v_add_f32 v84, v84, v87")
    red("add"); E("v_rcp_f32 v84, v84"); E(f"s_cmp_eq_u32 s{sF}, 0")
    for x in R6: E(f"v_mul_f32 v{x}, v{x}, v84")
    cvt(72,72,73,"abs"); cvt(73,74,75,"abs"); cvt(74,80,81,"abs")
    pub(lambda f:(bstore(2,"v[72:73]",vP1,WS,f"s{sP}",0,f),bstore(1,"v74",vP2,WS,f"s{sP}",0,f)),False)
    E(f"s_add_u32 s{sP}, s{sP}, 20480"); E("s_branch S_END")
    L("S_W1"); E(f"s_cmp_eq_u32 s{sW}, 1"); E("s_cbranch_scc1 S_W1B")
    qkwrite(); E("s_waitcnt lgkmcnt(0)"); E("s_barrier")
    E(f"s_bitcmp1_b32 s{sS}, 0"); E(f"s_cselect_b32 s{sT}, -1, 1"); E(f"s_mul_i32 s{sT}, s{sT}, 26624"); E(f"s_add_u32 s{sL}, s{sL}, s{sT}"); flagchk(1,63,72); kqdma(); E("s_branch S_END")
    L("S_W1B")
    qkwrite()
    E("s_waitcnt lgkmcnt(0)"); E("s_barrier"); stamp(3)
    for h in range(2):
        for u in range(6):
            for rd in range(2): E(f"ds_read_b64_tr_b16 {vr(ACC+4*u+2*rd,2)}, v{vX} offset:{(6*h+u)*640+rd*320}")
        for u in range(6): E(f"s_waitcnt lgkmcnt({10-2*u})"); mfma32(72,vr(ACC+4*u,4),vr(fr(6*h+u),4),"0" if h+u==0 else None)
        nop(8)
    stamp(4);
    for u in range(2): E(f"ds_read_b128 {vr(32+4*u,4)}, v{vK} offset:{12288+u*1024}")
    E("s_waitcnt lgkmcnt(0)")
    for j in range(8): E(f"v_lshlrev_b32 v{PT+2*j}, 16, v{32+j}"); E(f"v_and_b32 v{PT+2*j+1}, 0xffff0000, v{32+j}")
    softmax(list(range(PT,PT+16))+[72,73,74,75],76,77,(32,))
    pack(PT,PT,8); pack(72,72,2)
    pub(lambda f:([bstore(4,vr(PT+4*u,4),vP1,WS,f"s{sP}",u*1024,f) for u in range(2)],bstore(2,"v[72:73]",vP2,WS,f"s{sP}",0,f)))
    E(f"s_add_u32 s{sP}, s{sP}, {32*2560}");
    L("S_END"); stamp(5); stamp_acc(6)
    E(f"s_bitcmp1_b32 s{sS}, 0"); E(f"s_cselect_b32 s{sT}, -1, 1"); E(f"s_mul_i32 s{sT}, s{sT}, 26624"); E(f"v_add_u32 v{vK}, s{sT}, v{vK}")
    E(f"s_add_u32 s{sM}, s{sM}, 40960"); E(f"s_add_u32 s{sS}, s{sS}, 1"); E(f"s_cmp_lt_u32 s{sS}, 64"); E("s_cbranch_scc1 S_LOOP")
    E(f"s_cmp_eq_u32 s{sW}, 1"); E(f"s_cbranch_scc0 {EX[0]}"); E("s_waitcnt vmcnt(0)"); signal(f"s{sPr}",None,vMk,vSx); ph(4,72); E(f"s_branch {EX[0]}")
def role_v(ldf=os.environ.get("VF","sc1_nt").replace("_"," "),stf="sc1"):
    vA,vA2,vW,vW2,vR,vI,vZ,vZm,vXs,vXl,vMo,vL,vXs2,vXl2,vOwn,vPa,vPb=range(144,161)
    ACC=40; VO=64; VN=80; P=0; PT=116; ZM=128; D=132; XR=136
    stamp_init(); maddr(vA,vA2,vW,vW2,vR,vI,0)
    laneaddr(vZ,[(3,1,640),(4,3,128),(0,7,16)]); laneaddr(vZm,[(5,1,1280),(3,1,640),(0,7,16),(4,1,8)],512)
    laneaddr(vXs,[(3,1,81920),(4,3,64),(0,7,8)]); laneaddr(vXl,[(3,1,512),(4,3,64),(0,7,8)])
    laneaddr(vMo,[(0,7,16),(4,1,8),(5,1,4)]); E("v_and_b32 v1, 8, v255"); E("v_cmp_eq_u32 vcc, 0, v1"); E(f"v_mov_b32 v1, {BIG}"); E(f"v_lshlrev_b32 v{vL}, 4, v255"); E(f"v_cndmask_b32 v{vMo}, v1, v{vMo}, vcc")
    lanefield(2,3,1,1); E(f"v_add_u32 v3, 2, v2"); E("v_lshlrev_b32 v4, 1, v2"); E("v_add_u32 v5, 1, v4"); E(f"s_lshr_b32 s{sT}, s{sX}, 1")
    for d,src,c in ((vXs2,vXs,3),(vXs,vXs,2),(vXl2,vXl,5),(vXl,vXl,4)):
        E(f"v_cmp_eq_u32 vcc, s{sX}, v{c}"); nop(2); E(f"v_cndmask_b32 v{d}, v{src}, v1, vcc")
    E(f"v_cmp_eq_u32 vcc, s{sT}, v2"); nop(2); E(f"v_cndmask_b32 v{vOwn}, 0, -1, vcc")
    E(f"v_lshlrev_b32 v{vPa}, 4, v0"); E(f"v_lshlrev_b32 v{vPb}, 2, v0"); E(f"v_add_u32 v{vPb}, 4096, v{vPb}")
    E(f"s_sub_u32 s{sC}, s{sI}, 8"); E(f"s_lshl_b32 s{sC}, s{sC}, 2"); E(f"s_add_u32 s{sC}, s{sC}, s{sW}")
    E(f"s_mul_i32 s{sT}, s{sX}, 5120"); E(f"s_add_u32 s{sP}, s{sT}, {PM_OFF}"); E(f"s_mul_i32 s{sQ}, s{sC}, {ZJ}"); E(f"s_add_u32 s{sQ}, s{sQ}, s{sT}")
    E(f"s_lshl_b32 s{sT}, s{sC}, 10"); E(f"s_add_u32 s{sT}, s{sT}, {XB_OFF}"); E(f"s_lshl_b32 s{sA}, s{sX}, 8"); E(f"s_add_u32 s{sA}, s{sA}, s{sT}")
    E(f"s_mul_i32 s{sB}, s{sX}, 81920"); E(f"s_add_u32 s{sB}, s{sB}, s{sT}")
    E(f"s_lshl_b32 s{sU}, s{sC}, 7"); E(f"s_add_u32 s{sU}, s{sU}, 40960")
    E(f"s_mul_i32 s{sD}, s{sX}, 80"); E(f"s_add_u32 s{sD}, s{sD}, s{sC}"); E(f"s_mul_i32 s{sD}, s{sD}, {BWS}"); E(f"s_add_u32 s{sD}, s{sD}, {BW_OFF}")
    VP=168; ZP=184; vQ,vQm,vOb=188,190,166; PXL=32768; sPx=92; sOb=93
    [(laneaddr(vQ+g,[(3,1,2688-256*g),(4,3,512),(0,7,16)],PXL+128*g),laneaddr(vQm+g,[(5,1,5120),(3,1,2688-256*g),(0,7,16),(4,1,8)],PXL+2048+128*g)) for g in range(2)]; laneaddr(vOb,[(4,1,512),(3,1,128),(0,7,16),(5,1,8)])
    E(f"s_mul_i32 s{sL}, s{sW}, 5120"); E(f"s_mul_i32 s{sPx}, s{sX}, 20480"); E(f"s_add_u32 s{sPx}, s{sPx}, s{sL}"); E(f"s_add_u32 s{sPx}, s{sPx}, {PX_OFF-2*81920}"); E(f"s_add_u32 s{sL}, s{sL}, {PXL}")
    E(f"s_lshl_b32 s{sOb}, s{sC}, 2"); E(f"s_add_u32 s{sOb}, s{sOb}, s{sX}"); E(f"s_lshl_b32 s{sOb}, s{sOb}, 10"); E(f"s_add_u32 s{sOb}, s{sOb}, {OB_OFF-3*327680}")
    PF=os.environ.get('PF','sc1')
    def pxdma():
        E(f"s_mov_b32 m0, s{sL}"); E("s_nop 0")
        for j in range(4): E(f"buffer_load_dwordx4 v{vL},{S(WS)},s{sPx} offen offset:{j*1024} {PF} lds")
        E(f"s_add_u32 m0, s{sL}, 1024"); E(f"s_add_u32 s{sT}, s{sPx}, 1024"); E(f"s_add_u32 s{sPx}, s{sPx}, 81920"); E(f"buffer_load_dwordx4 v{vL},{S(WS)},s{sT} offen offset:3072 {PF} lds")
    def shift():
        for i in range(20): E(f"v_mov_b32 v{96+i}, v{VP+i}")
        for i in range(16): E(f"v_mov_b32 v{VP+i}, v{VO+i}")
        for i in range(4): E(f"v_mov_b32 v{ZP+i}, v{ZM+i}")
    def ob(hs=(0,1)):
        def rd(h,t):
            for g in range(2):
                if t<4: E(f"ds_read_b128 {vr(20*g+4*t,4)}, v{vQ+g} offset:{t*5120+h*256}")
                else:
                    for q in range(2): E(f"ds_read_b64 {vr(20*g+16+2*q,2)}, v{vQm+g} offset:{q*10240+h*256}")
        for t in range(5): rd(hs[0],t)
        for h in hs:
            more=h!=hs[-1]
            for t in range(5):
                E(f"s_waitcnt lgkmcnt({(10 if t<4 else 8) if more else (10-2*t if t<4 else 0)})")
                for g in range(2): mfma16(ACC+8*h+4*g,vr(96+4*t,4),vr(20*g+4*t,4),"0" if t==0 else None)
                if more: rd(h+1,t)
        nop(8 if len(hs)==1 else 4)
        for h in hs:
            for d in (ACC+8*h,ACC+8*h+4): E(f"v_permlane32_swap_b32 v{d}, v{d+2}"); E(f"v_permlane32_swap_b32 v{d+1}, v{d+3}")
        nop(1)
        for h in hs:
            a=ACC+8*h; b=a+4
            for i in range(2):
                E(f"v_add_f32_dpp v{56+2*h+i}, v{b+2+i}, v{a+i} row_ror:8 row_mask:0xf bank_mask:0x3"); E(f"v_add_f32_dpp v{56+2*h+i}, v{b+i}, v{a+2+i} row_ror:8 row_mask:0xf bank_mask:0xc")
    def obst():
        for u in range(2): bstore(2,vr(56+2*u,2),vOb,WS,f"s{sOb}",256*u,os.environ.get("OF","sc1").replace("_"," "))
        E(f"s_add_u32 s{sOb}, s{sOb}, 327680")
    E(f"v_mov_b32 v161, v{vFl}"); E("s_cmp_eq_u32 s2, 64"); E(f"s_cselect_b32 s{sT}, 0, {BIG}"); E(f"v_or_b32 v163, s{sT}, v{vFl}"); E("v_mov_b32 v164, -1"); E("v_mov_b32 v165, -1"); E(f"s_mov_b32 s{sPr}, {FLG(F_PR)}")
    E(f"s_lshl_b32 s{sG}, s{sX}, 7"); E(f"s_add_u32 s{sG}, s{sG}, {FLG(F_B)}"); fwait(f"s{sG}",40,0,2); ph(2,0)
    for j in range(80):
        if j%4==0: E(f"s_add_u32 s{sT}, s{sD}, {j*1024}")
        bload(4,ar(4*j,4) if j<64 else vr(192+4*(j-64),4),vL,WS,f"s{sT}",(j%4)*1024,os.environ.get("BWF","sc1"))
    E(f"s_lshl_b32 s{sG}, s{sX}, 11"); E(f"s_add_u32 s{sG}, s{sG}, {FLG(F_VO)}"); fwait(f"s{sG}",8,0,1); ph(3,0)
    for t in range(4): bload(4,vr(VN+4*t,4),vZ,WS,f"s{sQ}",t*1280,ldf)
    FA=int(os.environ.get("FA","1"))
    L("V_LOOP"); FA and flagchk(1,63,PT); shift()
    for i in range(16): E(f"v_mov_b32 v{ACC+i}, 0")
    if int(os.environ.get("DM","0")): E(f"s_sleep {os.environ['DM']}")
    mpoll(PT,vA,vA2,vW,vW2); stamp(1)
    for t in range(10): E(f"ds_read_b128 {vr(4*t,4)}, v{vR} offset:{t*1024}")
    for i in range(16): E(f"v_mov_b32 v{VO+i}, v{VN+i}")
    m=len(out)
    E(f"s_add_u32 s{sT}, s{sQ}, {Z_S}")
    for t in range(4): bload(4,vr(VN+4*t,4),vZ,WS,f"s{sT}",t*1280,ldf)
    E(f"s_bitcmp1_b32 s{sS}, 1"); E(f"s_cselect_b32 s{sPo}, -1, 1"); E(f"s_mul_i32 s{sPo}, s{sPo}, 655360"); E(f"s_add_u32 s{sPo}, s{sPo}, s{sA}"); E(f"s_add_u32 s{sT}, s{sPo}, 163840")
    bstore(2,"v[164:165]",vXs,WS,f"s{sPo}",0,"sc1"); bstore(2,"v[164:165]",vXs2,WS,f"s{sT}",0,"sc1")
    obst(); E(f"v_mov_b32 v162, s{sS}"); bstore(1,"v162",163,WS,f"s{sPr}",0,"sc1"); pxdma()
    fill=out[m:]; del out[m:]; EXP=os.environ.get('EXP','')
    fill=[x for x in fill if not(('v' in EXP and x.startswith('buffer_load_dwordx4 v[')) or ('s' in EXP and 'v[5' in x and x.startswith('buffer_store')) or ('p' in EXP and x.endswith('lds')))]
    def fl():
        while fill:
            x=fill.pop(0); E(x)
            if x.startswith("buffer"): break
    fl(); fl()
    for k in range(10):
        E(f"s_waitcnt lgkmcnt({9-k})")
        for t in range(4):
            f=t*10+k; smf(ACC+4*t,4*k,ar(8*f,8) if f<32 else vr(192+8*(f-32),8),vI)
            if t&1: fl()
    assert not fill
    E(f"s_bitcmp1_b32 s{sS}, 0"); E(f"s_cselect_b32 s{sT}, -1, 1"); E(f"s_mul_i32 s{sT}, s{sT}, 10240")
    for r in (vW,vW2,vR): E(f"v_add_u32 v{r}, s{sT}, v{r}")
    nop(3)
    for a in (ACC,ACC+8):
        for i in range(4): E(f"v_permlane32_swap_b32 v{a+i}, v{a+4+i}")
        for i in range(4): E(f"v_add_f32 v{a+i}, v{a+i}, v{a+4+i}")
    pack(ZM,ACC,2); pack(ZM+2,ACC+8,2)
    EXP=os.environ.get('EXP','')
    OBM=int(os.environ.get("OBM","0"))
    if OBM: E("s_waitcnt vmcnt(9)"); E("s_barrier"); ob((0,) if OBM==1 else (0,1))
    if not FA: flagchk(2,62,PT)
    stamp(2)
    if int(os.environ.get("DP","0")): E(f"s_sleep {os.environ['DP']}")
    def ld():
        for t in range(4): bload(4,vr(P+4*t,4),vZ,WS,f"s{sP}",t*1280,"sc1")
        bload(2,vr(P+16,2),vZm,WS,f"s{sP}",0,"sc1"); bload(2,vr(P+18,2),vZm,WS,f"s{sP}",2560,"sc1")
    CP=os.environ.get("CP","1")=="1"
    if not CP: poll(ld,range(P,P+20),PT); stamp(3)
    pl=lambda r:(bload(4,vr(r,4),vPa,WS,f"s{sP}",0,"sc1"),bload(1,vr(r+4),vPb,WS,f"s{sP}",0,"sc1"))
    pu=lambda r:(E(f"ds_write_b128 v{vPa}, {vr(r,4)} offset:20480"),E(f"ds_write_b32 v{vPb}, v{r+4} offset:20480"))
    GP=int(os.environ.get("GP","2"))
    if GP<0: poll(lambda:pl(PT),range(PT,PT+5),PT+5); pu(PT)
    else: poll2(pl,PT,PT+6,5,2,PT+5,GP,pu)
    if CP: E(f"s_cmp_eq_u32 s{sS}, 63"); E("s_waitcnt lgkmcnt(0)"); E("s_barrier"); E("s_cbranch_scc1 V_END"); stamp(3)
    for t in range(4*CP): E(f"ds_read_b128 {vr(P+4*t,4)}, v{vZ} offset:{20480+t*1280}")
    for t in range(2*CP): E(f"ds_read_b64 {vr(P+16+2*t,2)}, v{vZm} offset:{20480+t*2560}")
    for t in range(4): E(f"s_waitcnt lgkmcnt({5-t})"); mfma16(D,vr(VO+4*t,4),vr(P+4*t,4),"0" if t==0 else None)
    E("s_waitcnt lgkmcnt(0)"); mfma16(D,vr(ZM,4),vr(P+16,4))
    E(f"s_add_u32 s{sT}, s{sA}, 163840"); nop(7)
    E(f"v_permlane32_swap_b32 v{D}, v{D+2}"); E(f"v_permlane32_swap_b32 v{D+1}, v{D+3}"); nop(1)
    for i in range(2):
        E(f"v_add_f32_dpp v{XR+i}, v{D+2+i}, v{D+i} row_ror:8 row_mask:0xf bank_mask:0x3"); E(f"v_add_f32_dpp v{XR+i}, v{D+i}, v{D+2+i} row_ror:8 row_mask:0xf bank_mask:0xc")
    for i in range(2): E(f"v_min_u32 v{XR+i}, -2, v{XR+i}")
    bstore(2,vr(XR,2),vXs,WS,f"s{sA}",0,"sc1"); bstore(2,vr(XR,2),vXs2,WS,f"s{sT}",0,"sc1")
    for i in range(2): E(f"v_and_b32 v{D+i}, v{XR+i}, v{vOwn}")
    stamp(4)
    if OBM<2: ob((1,) if OBM else (0,1))
    if int(os.environ.get("DX","0")): E(f"s_sleep {os.environ.get('DX',3)}")
    xl=lambda r:(bload(2,vr(r,2),vXl,WS,f"s{sB}",0,"sc1"),bload(2,vr(r+2,2),vXl2,WS,f"s{sB}",256,"sc1"))
    xu=lambda r:[E(f"v_add_f32 v{XR+2+i}, v{r+i}, v{r+2+i}") for i in range(2)]
    GX=int(os.environ.get("GX","4"))
    if GX<0: poll(lambda:xl(0),range(4),PT); xu(0)
    else: poll2(xl,0,4,4,2,PT,GX,xu)
    stamp(5)
    for i in range(2): E(f"v_add_f32 v{XR+2+i}, v{XR+2+i}, v{D+i}")
    E(f"s_add_u32 s{sT}, s{sM}, s{sU}"); nop(1)
    for i in range(2): E(f"v_add_f32_dpp v{XR+4+i}, v{XR+2+i}, v{XR+2+i} row_ror:8 row_mask:0xf bank_mask:0xf")
    cvt(XR+6,XR+4,XR+5); E(f"v_min_u32 v{XR+6}, -2, v{XR+6}")
    pub(lambda f: bstore(1,f"v{XR+6}",vMo,WS,f"s{sT}",0,f))
    stamp(6); stamp_acc(7)
    for r,c in ((sM,40960),(sP,20480),(sQ,Z_S),(sS,1)): E(f"s_add_u32 s{r}, s{r}, {c}")
    E(f"s_and_b32 s{sT}, s{sS}, 3"); E(f"s_cselect_b32 s{sT}, 1, -3"); E(f"s_mul_i32 s{sT}, s{sT}, 327680"); E(f"s_add_u32 s{sA}, s{sA}, s{sT}"); E(f"s_add_u32 s{sB}, s{sB}, s{sT}")
    E("s_branch V_LOOP")
    L("V_END"); E(f"s_add_u32 s{sL}, s{sL}, 20480"); pxdma(); E(f"s_lshl_b32 s{sG}, s{sX}, 7"); E(f"s_add_u32 s{sG}, s{sG}, {FLG(F_SE)}")
    L("V_E1"); ob(); obst(); E(f"s_cmp_eq_u32 s{sS}, 65"); E("s_cbranch_scc1 V_E2")
    shift(); [E(f"v_add_u32 v{vQ+g}, 20480, v{vQ+g}") for g in range(4)]; E(f"s_add_u32 s{sS}, s{sS}, 1"); E(f"s_cmp_eq_u32 s{sS}, 65"); E("s_cbranch_scc1 V_E3")
    fwait(f"s{sG}",8,PT,1); E(f"s_add_u32 s{sL}, s{sL}, 20480"); pxdma(); E("s_barrier"); E("s_branch V_E1")
    L("V_E3"); E("s_waitcnt vmcnt(2)"); E("s_barrier"); E("s_branch V_E1")
    L("V_E2"); E(f"s_lshr_b32 s{sT}, s{sC}, 4"); E(f"s_lshl_b32 s{sT}, s{sT}, 7"); E(f"s_add_u32 s{sT}, s{sT}, {FLG(F_END)}"); E("s_waitcnt vmcnt(0)"); E("v_mov_b32 v162, 1"); E("s_barrier"); signal(f"s{sT}",None,162,161); ph(4,0); E(f"s_branch {EX[0]}")
```

```python
from base import *
SLOT=24576; NSLOT=5
vRING=192; NRING=8
vRB=224
vD1=230; vD2=231; vXO=232; vL16=233; vZO=234; vT=236; vFl=238; vOne=239; sBn=90; sAn=91; sFl=92; sFl2=93
import os
STF=os.environ.get("STF","sc1").replace("_"," ")
XG=int(os.environ.get("XG","1"))
GD=os.environ.get("GD")
def gst(k):
    if GD: E(f"s_memrealtime s[{72+2*k}:{73+2*k}]")
def gout():
    if GD:
        E("s_waitcnt lgkmcnt(0)")
        for k in range(4): E(f"v_mov_b32 v{240+k}, s{72+2*k}")
        E("v_mov_b32 v244, 0"); E(f"s_lshl_b32 s88, s{sTask}, 4"); E(f"s_add_u32 s88, s88, {WS_END+(4<<20)}"); bstore(4,"v[240:243]",244,WS,"s88"); E(f"s_add_u32 s{sTask}, s{sTask}, 256")
def ring_bases(b,hi_mul):
    laneaddr(b,[(5,1,hi_mul),(2,3,64),(4,1,32),(0,3,8)])
    E(f"v_add_u32 v{b+1}, {2*SLOT}, v{b}"); E(f"v_add_u32 v{b+2}, {4*SLOT}, v{b}")
def dma_off(dst,RS,TPS):
    laneaddr(dst,[(2,7,RS),(5,1,TPS),(0,3,16)])
    E(f"s_mul_i32 s{sT}, s{sW}, {8*RS}"); E(f"v_add_u32 v{dst}, s{sT}, v{dst}")
def signal(soff,vm=None,one=vOne,fl=vFl):
    E(f"buffer_atomic_add v{one},v{fl},{S(WS)},{soff} offen sc1")
    if vm: vm.op('f')
def drain_signal(soff):
    E("s_waitcnt vmcnt(0)"); E("s_barrier"); signal(soff)
def run_stages(vm,stages,pre=None,loop=None):
    n=len(stages)
    def dma(i):
        if i>=n and not loop: return []
        r=[]; i%=n
        for j,(srd,voff,sb,c) in enumerate(stages[i]['dma']):
            def f(i=i,j=j,srd=srd,voff=voff,sb=sb,c=c):
                E(f"s_add_u32 m0, s{sL}, {(i%NSLOT)*SLOT+j*1024}"); E(f"s_add_u32 s{sT}, s{sb}, {c}")
                E(f"buffer_load_dwordx4 v{voff},{S(srd)},s{sT} offen lds"); vm.op(('d',i))
            r.append(f)
        return r
    gst(0); E("s_barrier")
    for f in dma(0)+dma(1): f()
    if pre: pre()
    for f in dma(2)+dma(3): f()
    flat=[(i,k) for i in range(n) for k in range(len(stages[i]['mm']))]
    LA=NRING-2
    def rd(g):
        i,k=flat[g]; rb,o0,o1,_=stages[i]['mm'][k]; sl=i%NSLOT; r=vRING+4*(g%NRING)
        for q,o in enumerate((o0,o1)):
            E(f"ds_read_b64_tr_b16 {vr(r+2*q,2)},v{rb+sl//2} offset:{(sl%2)*SLOT+o}")
    BK=int(os.environ.get("BK","1"))
    def body():
        pend=[]; N=len(flat)
        for g,(i,k) in enumerate(flat):
            nk=len(stages[i]['mm'])
            if k==0:
                if not BK or (g==0 and not loop):
                    vm.wait(('d',0 if BK else ((i+1)%n if loop else min(i+1,n-1))))
                    if i==0: vm.wait('x')
                    E("s_barrier")
                pend=dma(i+4)
                if i==0:
                    gst(1)
                    if not(BK and loop):
                        for q in range(LA): rd(q)
            if BK and k==nk-LA and (loop or i+1<n): vm.wait(('d',(i+1)%n)); E("s_barrier")
            if g+LA<N: rd(g+LA)
            elif BK and loop: rd(g+LA-N)
            left=LA if BK and loop else min(LA,N-1-g)
            E(f"s_waitcnt lgkmcnt({min(2*left,15)})")
            stages[i]['mm'][k][3](vr(vRING+4*(g%NRING),4))
            if pend and (k%2==1 if BK else k%3==1): pend.pop(0)()
            for f in stages[i].get('post',{}).get(k,[]): f()
            if k==nk-1: assert not pend
        gst(2)
    if loop and BK:
        vm.all(); E("s_barrier"); ph(8)
        for q in range(LA): rd(q)
        assert len(flat)%NRING==0
    if loop:
        vm.all(); m=len(out); body(); del out[m:]; L(loop)
    body()
def xload(vm,fl=""):
    for t in range(40):
        if t%4==0: E(f"s_add_u32 s{sT}, s{sA}, {t*1024}")
        bload(4,ar(4*t,4),vL16,WS,f"s{sT}",(t%4)*1024,fl); vm.op('x')
def rowbase(base=0):
    E(f"s_lshl_b32 s{sC}, s{sR}, 2"); E(f"s_add_u32 s{sC}, s{sC}, s{sW}"); E(f"s_mul_i32 s{sA}, s{sC}, {32*1280}")
    if base: E(f"s_add_u32 s{sA}, s{sA}, {base}")
def s1_stages(NT,KS,RS,pairs,swap=()):
    st=[]; NP=NT//2
    for i in range(40//KS):
        d=[(pairs[j%NP][0],vD1,sB,(i*KS*16+32*(j//NP))*RS+pairs[j%NP][1]) for j in range(NP*KS//2)]
        mm=[]
        for kk in range(KS):
            for f in range(NT):
                o=2*(kk&1)*6144+(NP*(kk>>1)+(f>>1))*1024+(f&1)*512; t=i*KS+kk
                def em(w,f=f,t=t):
                    a,b=(w,ar(4*t,4)) if f not in swap else (ar(4*t,4),w)
                    mfma32(16*f,a,b,"0" if t==0 else None)
                mm.append((vRB,o,o+256,em))
        st.append(dict(dma=d,mm=mm))
    return st
def s2_stages(vm,JS,KSTR,perm,loc=False):
    st=[]
    def epi(i):
        acc=32*(i&1)
        for f in range(2):
            for u in range(2):
                for j in range(4): cvt(144+8*f+4*u+perm[j],acc+16*f+8*u+2*j,acc+16*f+8*u+2*j+1)
            E(f"s_add_u32 s{sT}, s{sD}, {(2*i+f)*4*JS}")
            lb=f"BS{i}_{f}"
            if loc:
                E(f"s_cmp_eq_u32 s{sF}, 0"); E(f"s_cbranch_scc1 {lb}")
                for u in range(2): bstore(4,vr(144+8*f+4*u,4),vZO,WS,f"s{sT}",2*u*KSTR)
                E(f"s_branch {lb}e"); L(lb)
            for u in range(2): bstore(4,vr(144+8*f+4*u,4),vZO,WS,f"s{sT}",2*u*KSTR,STF); vm.op('st')
            if loc: L(lb+"e")
    for i in range(10):
        d=[(WO,vD2,sB2,32*j*1280+i*128) for j in range(6)]
        mm=[]
        for u in range(12):
            for f in range(2):
                o=2*(u&1)*6144+(u>>1)*1024+f*512
                def em(w,f=f,u=u,i=i): mfma32(32*(i&1)+16*f,vr(96+4*u,4),w,"0" if u==0 else None)
                mm.append((vRB+3,o,o+6144,em))
        post={}
        if i>0: post[8]=[lambda i=i: epi(i-1)]
        st.append(dict(dma=d,mm=mm,post=post))
    return st,epi
def common_setup():
    ring_bases(vRB,6144); ring_bases(vRB+3,256)
    E(f"v_lshlrev_b32 v{vL16}, 4, v255")
    dma_off(vD2,1280,64)
    E(f"s_mul_i32 s{sL}, s{sW}, 6144")
    E(f"v_or_b32 v{vOne}, s{sW}, v255"); E(f"v_cmp_eq_u32 vcc, 0, v{vOne}"); E(f"v_mov_b32 v{vOne}, 1"); E(f"v_mov_b32 v{vFl}, {BIG}"); E(f"v_cndmask_b32 v{vFl}, v{vFl}, 0, vcc")
def pack(dst,src,n):
    for j in range(n): cvt(dst+j,src+2*j,src+2*j+1)
def qk_epi(vm):
    nop(12); pack(0,0,96); nop(2)
    for u in range(12): mfma32(96,vr(48+4*u,4),vr(4*u,4),"0" if u==0 else None)
    E(f"s_lshl_b32 s{sE}, s{sC}, 5"); E(f"s_add_u32 s{sE}, s{sE}, s{sH}"); E(f"s_mul_i32 s{sD}, s{sE}, 12288")
    laneaddr(vT,[(3,1,1024),(5,1,256),(4,1,128),(0,7,16)])
    for u in range(12):
        if u%4==0: E(f"s_add_u32 s{sT}, s{sD}, {KX_OFF+u*1024}")
        bstore(4,vr(48+4*u,4),vT,WS,f"s{sT}",(u&2)*1024+(u&1)*512,STF); vm.op('st')
    for u in range(12):
        if u%4==0: E(f"s_add_u32 s{sT}, s{sD}, {QX_OFF+u*1024}")
        bstore(4,vr(4*u,4),vL16,WS,f"s{sT}",(u%4)*1024,STF); vm.op('st')
    E(f"s_lshl_b32 s{sT}, s{sE}, 11"); E(f"s_add_u32 s{sT}, s{sT}, {SX_OFF}")
    lanefield(vT,5,1,4); E(f"v_and_b32 v{vT+1}, 31, v255"); E(f"v_sub_u32 v{vT}, v{vT+1}, v{vT}"); E(f"v_mov_b32 v{vT+1}, 0xff800000")
    for i in range(16):
        E(f"v_cmp_le_i32 vcc, {8*(i>>2)+(i&3)}, v{vT}"); nop(2); E(f"v_cndmask_b32 v{96+i}, v{vT+1}, v{96+i}, vcc")
    pack(96,96,8)
    for q in range(2): bstore(4,vr(96+4*q,4),vL16,WS,f"s{sT}",q*1024,STF); vm.op('st')
def loop_task(vo):
    vm=VM(); dma_off(vD1,12288,64); rowbase(XF_OFF); E(f"s_mul_i32 s{sB}, s{sH}, 384"); E(f"s_mov_b32 s{sFl2}, {FLG(255)}"); E(f"s_mov_b32 s{sPh}, 0")
    def top():
        E(f"s_add_u32 s{sT}, s{sPh}, 1"); E(f"s_min_u32 s{sT}, s{sT}, 7"); E(f"s_and_b32 s86, s{sT}, 6"); E("s_lshl_b32 s86, s86, 1"); E("s_lshr_b32 s87, s7, 2"); E("s_add_u32 s87, s87, s86")
        E(f"s_and_b32 s{sT}, s{sT}, 1"); E(f"s_lshl_b32 s{sT}, s{sT}, 2"); E(f"s_and_b32 s86, s{sH}, {0x1b}"); E(f"s_or_b32 s86, s86, s{sT}")
        E(f"s_add_u32 s{sT}, s{sR}, 2"); E(f"s_cmp_lt_u32 s{sPh}, 3"); E(f"s_cselect_b32 s86, s{sH}, s86"); E(f"s_cselect_b32 s87, s{sT}, s87")
        E(f"s_sub_u32 s{sT}, s87, s{sR}"); E(f"s_mul_i32 s{sT}, s{sT}, {128*1280}"); E(f"s_add_u32 s{sAn}, s{sA}, s{sT}")
        if vo: E(f"s_mul_i32 s{sD}, s{sC}, {Z_S}"); E(f"s_mul_i32 s{sBn}, s{sH}, 640"); E(f"s_add_u32 s{sD}, s{sD}, s{sBn}"); E(f"s_mul_i32 s{sB2}, s{sH}, {192*1280}")
    def nb(): E(f"s_mul_i32 s{sB}, s86, 384")
    def xl(t):
        def f():
            E(f"s_cmp_eq_u32 s{sAn}, s{sA}"); E(f"s_cbranch_scc1 XL{vo}_{t}"); E(f"s_add_u32 s{sT}, s{sAn}, {t*1024}")
            for q in range(2): bload(4,ar(4*t+4*q,4),vL16,WS,f"s{sT}",1024*q)
            L(f"XL{vo}_{t}")
        return f
    if vo:
        laneaddr(vZO,[(3,3,ZJ),(5,1,128),(0,7,16)])
        a=s1_stages(6,4,12288,[(WV,0),(WV,128),(WV,256)]); b,epi=s2_stages(vm,ZJ,128,[0,1,2,3]); st=a+b
        for t in range(0,40,2): st[1+t//4].setdefault('post',{}).setdefault(14+2*(t&2),[]).append(xl(t))
        a[-1]['post'][23]=[lambda:(nop(12),pack(96,0,48))]
        b[9]['post'][23]=[lambda:(nop(12),epi(9))]
    else:
        st=s1_stages(12,2,12288,[(WQ,0),(WQ,128),(WQ,256),(WK,0),(WK,128),(WK,256)])
        for i in range(20): st[i]['post']={23:[xl(2*i)]}
        st[19]['post'][23].append(lambda: qk_epi(vm))
    st[0].setdefault('post',{})[0]=[top]
    st[15]['post'].setdefault(23,[]).append(nb); st[10]['post'].setdefault(0,[]).append(lambda: gst(0)); st[19]['post'].setdefault(22,[]).append(lambda: gst(3))
    st[3].setdefault('post',{}).setdefault(19,[]).append(lambda: signal(f"s{sFl2}",vm))
    lb=f"TL{vo}"
    run_stages(vm,st,lambda:(gwait(0),E("s_bitcmp1_b32 s7, 3"),E(f"s_cbranch_scc1 {lb}x"),xload(vm),L(lb+"x")),loop=lb)
    E(f"s_lshl_b32 s{sFl2}, s{sR}, 7"); E(f"s_add_u32 s{sFl2}, s{sFl2}, s{sFl}"); E(f"s_mov_b32 s{sH}, s86"); E(f"s_mov_b32 s{sR}, s87"); E(f"s_mov_b32 s{sA}, s{sAn}")
    E(f"s_lshl_b32 s{sC}, s{sR}, 2"); E(f"s_add_u32 s{sC}, s{sC}, s{sW}"); gout()
    E(f"s_cmp_lt_u32 s{sPh}, 2"); E(f"s_cbranch_scc0 {lb}n"); drain_signal(f"s{sFl2}"); E(f"s_mov_b32 s{sFl2}, {FLG(255)}"); L(lb+"n")
    E(f"s_add_u32 s{sPh}, s{sPh}, 1"); E(f"s_cmp_lt_u32 s{sPh}, 8"); E(f"s_cbranch_scc1 {lb}")
    drain_signal(f"s{sFl2}")
def task_b(chk,h2,h7):
    vm=VM(); E(f"s_mul_i32 s{sB2}, s{sH}, {192*1280}")
    laneaddr(vD1,[(0,31,12288),(5,1,8)]); laneaddr(vZO,[(3,3,BWS),(5,1,256),(0,7,16)])
    E(f"s_lshl_b32 s{sC}, s{sR}, 2"); E(f"s_add_u32 s{sC}, s{sC}, s{sW}")
    E(f"s_mul_i32 s{sA}, s{sC}, {32*12288}"); E(f"s_mul_i32 s{sT}, s{sH}, 384"); E(f"s_add_u32 s{sA}, s{sA}, s{sT}")
    E(f"s_lshr_b32 s{sD}, s{sH}, 3"); E(f"s_mul_i32 s{sD}, s{sD}, {80*BWS}")
    E(f"s_bfe_u32 s{sT}, s{sH}, 0x20001"); E(f"s_mul_i32 s{sT}, s{sT}, 20480"); E(f"s_add_u32 s{sD}, s{sD}, s{sT}")
    E(f"s_and_b32 s{sT}, s{sH}, 1"); E(f"s_lshl_b32 s{sT}, s{sT}, 7"); E(f"s_add_u32 s{sD}, s{sD}, s{sT}")
    E(f"s_lshl_b32 s{sT}, s{sC}, 10"); E(f"s_add_u32 s{sD}, s{sD}, s{sT}"); E(f"s_add_u32 s{sD}, s{sD}, {BW_OFF}")
    def pre():
        for u in range(24): bload(2,vr(96+2*u,2),vD1,WV,f"s{sA}",16*u); vm.op('x')
        chk()
    b,epi=s2_stages(vm,BWS,256,[0,2,1,3],os.environ.get('BL','1')=='1')
    b[2]['post'][20]=[h2]; b[int(os.environ.get('H7','7'))]['post'][21]=[h7]
    run_stages(vm,b,pre); nop(12); epi(9)
def task_a():
    vm=VM(); dma_off(vD1,3840,40); rowbase(XF_OFF); E(f"s_mul_i32 s{sB}, s{sH}, 160")
    run_stages(vm,s1_stages(12,2,3840,[(WQKV,1280*m+80*p) for m in range(3) for p in range(2)],swap=(8,9,10,11)),lambda: xload(vm))
    E("v_cmp_gt_u32 vcc, 32, v255"); E(f"v_and_b32 v{vT}, 31, v255"); E(f"v_cmp_eq_u32 s[94:95], 20, v{vT}")
    E(f"s_mov_b32 s{sE}, 0x{QSC:x}"); E(f"v_mov_b32 v{vT}, 0x3f803f80")
    E(f"s_lshl_b32 s{sD}, s{sH}, 8"); E(f"s_add_u32 s{sD}, s{sD}, s{sC}"); E(f"s_lshl_b32 s{sD}, s{sD}, 11")
    nop(8)
    for f in range(12):
        b=16*f
        if f<4:
            for j in range(12): E(f"v_mul_f32 v{b+j}, s{sE}, v{b+j}")
        if f<8:
            pack(b,b,6); E(f"v_cndmask_b32 v{b+4}, 0, v{b+4}, vcc"); E(f"v_cndmask_b32 v{b+5}, 0, v{b+5}, vcc")
            E(f"v_mov_b32 v{b+6}, 0"); E(f"v_mov_b32 v{b+7}, 0")
        else:
            pack(b,b,8)
            for j in range(8): E(f"v_cndmask_b32 v{b+j}, v{b+j}, v{vT}, s[94:95]")
        E(f"s_add_u32 s{sT}, s{sD}, {AQ_OFF+(f>>2)*AQ_SZ+(f&3)*64*2048}")
        for u in range(2): bstore(4,vr(b+4*u,4),vL16,WS,f"s{sT}",u*1024,STF)
def scale8(d,src,g,t):
    for j in range(8):
        E(f"v_lshlrev_b32 v{t}, 16, v{src+j}"); E(f"v_and_b32 v{t+1}, 0xffff0000, v{src+j}"); E(f"v_mul_f32 v{t}, v{g}, v{t}"); E(f"v_mul_f32 v{t+1}, v{g}, v{t+1}"); cvt(d+j,t,t+1)
def add8(d,a,b,t):
    for j in range(8):
        E(f"v_lshlrev_b32 v{t}, 16, v{a+j}"); E(f"v_and_b32 v{t+1}, 0xffff0000, v{a+j}"); E(f"v_lshlrev_b32 v{t+2}, 16, v{b+j}"); E(f"v_and_b32 v{t+3}, 0xffff0000, v{b+j}")
        E(f"v_add_f32 v{t}, v{t}, v{t+2}"); E(f"v_add_f32 v{t+1}, v{t+1}, v{t+3}"); cvt(d+j,t,t+1)
def task_ao():
    vm=VM(); dma_off(vD1,1280,64); rowbase(AO_OFF); E(f"s_lshl_b32 s{sB}, s{sH}, 8")
    E(f"s_mul_i32 s{sD}, s{sC}, 5"); E(f"s_add_u32 s{sD}, s{sD}, s{sH}"); E(f"s_lshl_b32 s{sD}, s{sD}, 13"); E(f"s_add_u32 s{sD}, s{sD}, {AA_OFF}"); E(f"s_add_u32 s{sE}, s{sD}, 4096")
    def pre():
        xload(vm,"sc1")
        lanefield(245,0,31,4); E(f"s_lshl_b32 s{sT}, s{sC}, 7"); E(f"s_add_u32 s{sT}, s{sT}, {G_OFF}"); bload(1,"v244",245,WS,f"s{sT}",0,"sc1"); vm.op('t')
    st=s1_stages(4,4,1280,[(AWO,0),(AWO,128)])
    run_stages(vm,st,pre)
    laneaddr(245,[(0,31,1280),(5,1,8)]); E(f"s_mul_i32 s{sA}, s{sC}, {32*1280}"); E(f"s_add_u32 s{sA}, s{sA}, s{sB}")
    nop(6); pack(0,0,32)
    for f in range(4): scale8(8*f,8*f,244,240)
    E(f"s_cmp_lt_u32 s{sR}, {RT0}"); E("s_cbranch_scc1 AO_C")
    for u in range(8): bstore(4,vr(4*u,4),vL16,WS,f"s{(sD,sE)[u>>2]}",(u%4)*1024,STF)
    drain_signal(f"s{sFl}"); ph(6); E("s_endpgm")
    L("AO_C"); fwait(f"s{sFl}",4,240)
    for u in range(8): bload(4,vr(64+4*u,4),vL16,WS,f"s{(sD,sE)[u>>2]}",(u%4)*1024,"sc1")
    for f in range(4):
        E(f"s_waitcnt vmcnt({6+2*f})"); add8(8*f,8*f,64+8*f,240)
        for q in range(4): bstore(2,vr(8*f+2*q,2),245,OUT,f"s{sA}",64*f+16*q)
    ph(6); E("s_endpgm")
def obfin(b,a,g,first):
    if first: E(f"v_sub_f32 v{g}, 1.0, v{g}"); cvt(g,g,g); E(f"v_lshlrev_b32 v{g}, 16, v{g}")
    for q in range(4):
        r=b+16*q
        for d,c in ((0,4),(8,12),(0,8)):
            for k in (0,2): E(f"v_pk_add_f32 {vr(r+d+k,2)}, {vr(r+d+k,2)}, {vr(r+c+k,2)}")
        pack(32+2*q,r,2)
    scale8(32,32,g,240); a is None or add8(a,a,32,240)
import struct,math
def f2u(x): return struct.unpack("<I",struct.pack("<f",x))[0]
LOG2E=math.log2(math.e)
QSC=f2u(20**-0.5*LOG2E); BSC=f2u(192**-0.5*LOG2E)
```

```python
from base import *
from gemm import *
def init_part():
    E("s_lshl_b32 s70, s2, 12"); E("v_lshlrev_b32 v1, 4, v0"); E("v_add_u32 v1, s70, v1")
    for i in range(4): E(f"v_mov_b32 v{4+i}, -1")
    n=SENT_END-SENT_BEG; full=n>>20; rem=n-(full<<20)
    for it in range(full):
        E(f"s_mov_b32 s{sT}, {SENT_BEG+(it<<20)}"); bstore(4,"v[4:7]",1,WS,f"s{sT}",0,IFL)
    E(f"v_cmp_gt_u32 vcc, {rem}, v1"); E(f"v_mov_b32 v2, {BIG}"); E(f"s_mov_b32 s{sT}, {SENT_BEG+(full<<20)}"); E("v_cndmask_b32 v2, v2, v1, vcc")
    bstore(4,"v[4:7]",2,WS,f"s{sT}",0,IFL)
    E("v_cmp_gt_u32 vcc, 0x8000, v1"); E(f"v_mov_b32 v2, {BIG}")
    for i in range(4): E(f"v_mov_b32 v{8+i}, 0")
    E("v_cndmask_b32 v2, v2, v1, vcc"); E(f"s_mov_b32 s{sT}, {FL_OFF}"); bstore(4,"v[8:11]",2,WS,f"s{sT}",0,IFL)
    E("v_lshrrev_b32 v2, 4, v1"); E("v_and_b32 v3, 7, v2"); E("v_mul_u32_u24 v3, 1280, v3"); E("v_lshrrev_b32 v2, 3, v2"); E("v_lshl_add_u32 v3, v2, 4, v3")
    E("v_cmp_gt_u32 vcc, 10240, v1"); E(f"v_mov_b32 v2, {BIG}"); E("s_nop 0"); E("v_cndmask_b32 v3, v2, v3, vcc"); E("v_cndmask_b32 v2, v2, v1, vcc")
    bload(4,"v[12:15]",3,MEM0,"0")
    laneaddr(16,[(0,31,8)]); lanefield(17,5,1,1280,16)
    E("s_lshl_b32 s70, s2, 2"); E(f"s_add_u32 s70, s70, s{sW}"); E(f"s_mul_i32 s{sT}, s70, 2560")
    for i in range(5): bload(2,vr(20+2*i,2),17,X,f"s{sT}",256*i); bload(2,vr(30+2*i,2),16,GW,"0",256*i)
    WM=int(os.environ.get("WM","0"))
    if WM:
        E("s_lshr_b32 s71, s2, 3"); E("s_lshl_b32 s71, s71, 8"); E("v_add_u32 v50, s71, v0"); E("v_lshlrev_b32 v51, 15, v50"); E(f"v_lshlrev_b32 v50, {os.environ.get('WSH',12)}, v50")
        for j,srd in enumerate((WQ,WK,WV,WO,WQKV,AWO,OUT)): bload(1,f"v{52+j}",50,srd,"0")
        bload(1,"v60",51,WS,"0")
    E(f"s_waitcnt vmcnt({10+8*WM})")
    for i in range(4): E(f"v_min_u32 v{12+i}, -2, v{12+i}")
    for x in range(4): E(f"s_mov_b32 s{sT}, {M_OFF+x*10240}"); bstore(4,"v[12:15]",2,WS,f"s{sT}",0,IFL)
    laneaddr(45,[(1,15,512),(5,1,16),(0,1,8)]); E("s_lshr_b32 s71, s70, 4"); E("s_mul_i32 s71, s71, 40960"); E(f"s_and_b32 s{sT}, s70, 15"); E(f"s_lshl_b32 s{sT}, s{sT}, 5"); E(f"s_add_u32 s71, s71, s{sT}")
    E(f"s_waitcnt vmcnt({4+8*WM})"); E("v_mov_b32 v40, 0")
    for i in range(5): E(f"s_add_u32 s{sT}, s71, {XF_OFF+8192*i}"); bstore(2,vr(20+2*i,2),45,WS,f"s{sT}",0,IFL)
    for i in range(10):
        E(f"v_lshlrev_b32 v41, 16, v{20+i}"); E(f"v_lshlrev_b32 v42, 16, v{30+i}"); E(f"v_and_b32 v43, 0xffff0000, v{20+i}"); E(f"v_and_b32 v44, 0xffff0000, v{30+i}")
        E("v_mul_f32 v41, v41, v42"); E("v_mul_f32 v43, v43, v44"); cvt(41,41,43)
        E("v_lshlrev_b32 v42, 16, v41"); E("v_and_b32 v41, 0xffff0000, v41"); E("v_add_f32 v40, v40, v42"); E("v_add_f32 v40, v40, v41")
    for o in (0x041F,0x081F,0x101F,0x201F,0x401F):
        E(f"ds_swizzle_b32 v41, v40 offset:{o}"); E("s_waitcnt lgkmcnt(0)"); E("v_add_f32 v40, v40, v41")
    cvt(40,40,40); E("v_lshlrev_b32 v40, 16, v40"); E(f"v_mul_f32 v40, 0x{f2u(-LOG2E):x}, v40"); E("v_exp_f32 v40, v40"); E("s_nop 0")
    E("v_add_f32 v40, 1.0, v40"); E("v_rcp_f32 v40, v40"); E("s_nop 0"); cvt(40,40,40); E("v_lshlrev_b32 v40, 16, v40")
    lanefield(41,5,1,4); E("s_lshl_b32 s70, s70, 3"); E(f"s_add_u32 s70, s70, {G_OFF}")
    bstore(1,"v40",41,WS,"s70",0,IFL)
    if not ONE: E("s_waitcnt vmcnt(0)"); return
    E("v_cmp_eq_u32 vcc, 0, v0"); E(f"v_mov_b32 v2, {BIG}"); E("v_mov_b32 v3, 1"); E("v_cndmask_b32 v2, v2, 0, vcc"); E("s_bfe_u32 s70, s2, 0x10003"); E("s_lshl_b32 s70, s70, 7")
    E("s_waitcnt vmcnt(0)"); E("s_barrier"); E(f"buffer_atomic_add v3,v2,{S(DBG)},s70 offen sc1")
def attention(ldf="",stf=""):
    vQ=0; vC=32; vO=96; vS=160; vK=192; vP=224; vA=250; vM=240
    E(f"s_lshl_b32 s{sA}, s{sH}, 17"); E(f"s_add_u32 s{sA}, s{sA}, {AQ_OFF}")
    E(f"s_lshl_b32 s{sC}, s{sR}, 2"); E(f"s_add_u32 s{sC}, s{sC}, s{sW}"); E(f"s_lshl_b32 s{sT}, s{sC}, 13"); E(f"s_add_u32 s{sT}, s{sT}, s{sA}")
    E(f"v_lshlrev_b32 v{vA}, 4, v255")
    for i in range(8):
        if i==4: E(f"s_add_u32 s{sT}, s{sT}, 4096")
        bload(4,vr(vQ+4*i,4),vA,WS,f"s{sT}",(i%4)*1024,ldf)
    vKA=vA+1
    E(f"s_lshl_b32 s{sL}, s{sW}, 12"); E(f"s_add_u32 s{sB}, s{sA}, s{sL}"); E(f"v_mov_b32 v{vKA}, v{vA}")
    for c in range(8):
        E(f"s_add_u32 m0, s{sL}, {c*16384}"); E(f"s_add_u32 s{sT}, s{sB}, {AQ_SZ+c*16384}")
        for i in range(4): E(f"buffer_load_dwordx4 v{vA},{S(WS)},s{sT} offen offset:{i*1024} lds")
    for i in range(4): E(f"v_mov_b32 v{vM+i}, 0xff800000")
    for i in range(32): E(f"v_mov_b32 v{vC+32+i}, 0xff800000")
    def kr(r,n,o):
        for i in range(n): E(f"ds_read_b128 {vr(r+4*i,4)}, v{vKA} offset:{o+i*1024}")
    def p1(cur,nxt,o):
        kr(nxt,4,o); E("s_waitcnt lgkmcnt(4)")
        for n in range(8):
            kb,q=n>>2,n&3; d=vC+16*q; pq=(n-2)&3; p=vC+16*pq
            mfma32(d,vr(cur+8*kb,4),vr(vQ+8*q,4),"0")
            for j in range(4): E(f"v_max3_f32 v{vM+pq}, v{vM+pq}, v{p+2*j}, v{p+2*j+1}")
            mfma32(d,vr(cur+8*kb+4,4),vr(vQ+8*q+4,4))
            for j in range(4,8): E(f"v_max3_f32 v{vM+pq}, v{vM+pq}, v{p+2*j}, v{p+2*j+1}")
    for hf,(w,n) in enumerate(((24,3),(0,13))):
        E(f"s_waitcnt vmcnt({w})"); E("s_barrier"); hf or kr(vK,4,0)
        E(f"s_mov_b32 s{sE}, {n}"); L(f"AT_P1{hf}"); p1(vK,vK+16,4096); p1(vK+16,vK,8192); E(f"v_add_u32 v{vKA}, 8192, v{vKA}")
        E(f"s_sub_u32 s{sE}, s{sE}, 1"); E(f"s_cmp_lg_u32 s{sE}, 0"); E(f"s_cbranch_scc1 AT_P1{hf}")
    E(f"s_add_u32 s{sB}, s{sA}, {2*AQ_SZ}"); E(f"s_add_u32 s{sB2}, s{sB}, {63*2048}"); E(f"v_mov_b32 v{vKA}, v{vA}"); E("s_waitcnt lgkmcnt(0)")
    def ld2(r,so,o):
        kr(r,2,o)
        for i in range(2): bload(4,vr(r+8+4*i,4),vA,WS,so,i*1024,ldf)
    ld2(vK,f"s{sB}",0); nop(8)
    for q in (2,3):
        for j in range(8): E(f"v_max3_f32 v{vM+q}, v{vM+q}, v{vC+16*q+2*j}, v{vC+16*q+2*j+1}")
    for q in range(4):
        E(f"v_mov_b32 v{vM+4}, v{vM+q}"); nop(2); E(f"v_permlane32_swap_b32 v{vM+q}, v{vM+4}"); E(f"v_max_f32 v{vM+q}, v{vM+q}, v{vM+4}")
        for j in range(16): E(f"v_sub_f32 v{vC+16*q+j}, 0, v{vM+q}"); E(f"v_mov_b32 v{vO+16*q+j}, 0")
    E("s_waitcnt vmcnt(0) lgkmcnt(0)")
    mfma32(vS,vr(vK,4),vr(vQ,4),vr(vC,16)); mfma32(vS,vr(vK+4,4),vr(vQ+4,4)); nop(8)
    def p2(cur,nxt,o):
        E(f"s_add_u32 s{sB}, s{sB}, 2048"); E(f"s_min_u32 s{sT}, s{sB}, s{sB2}"); ld2(nxt,f"s{sT}",o)
        for q in range(4):
            s=vS+16*(q&1); d=vS+16*((q+1)&1); nq=(q+1)&3; k=cur if q<3 else nxt; P=vP+8*(q&1)
            if q==3: E("s_waitcnt lgkmcnt(0)")
            mfma32(d,vr(k,4),vr(vQ+8*nq,4),vr(vC+16*nq,16))
            for j in range(4): E(f"v_exp_f32 v{s+j}, v{s+j}")
            mfma32(d,vr(k+4,4),vr(vQ+8*nq+4,4))
            for j in range(4,9): E(f"v_exp_f32 v{s+j}, v{s+j}")
            pack(P,s,4)
            for j in range(9,11): E(f"v_exp_f32 v{s+j}, v{s+j}")
            if q==0: E("s_waitcnt vmcnt(2)")
            mfma32(vO+16*q,vr(cur+8,4),vr(P,4))
            for j in range(11,16): E(f"v_exp_f32 v{s+j}, v{s+j}")
            E("s_nop 0"); pack(P+4,s+8,4); nop(2)
            mfma32(vO+16*q,vr(cur+12,4),vr(P+4,4))
    E(f"s_mov_b32 s{sE}, 32"); L("AT_P2"); p2(vK,vK+16,2048); p2(vK+16,vK,4096); E(f"v_add_u32 v{vKA}, 4096, v{vKA}")
    E(f"s_sub_u32 s{sE}, s{sE}, 1"); E(f"s_cmp_lg_u32 s{sE}, 0"); E("s_cbranch_scc1 AT_P2")
    E(f"s_mul_i32 s{sT}, s{sH}, 5"); E(f"v_lshrrev_b32 v{vA}, 5, v255"); E(f"v_add_u32 v{vA}, s{sT}, v{vA}"); E(f"v_and_b32 v{vA+1}, 1, v{vA}"); E(f"v_lshrrev_b32 v{vA}, 1, v{vA}"); E(f"v_lshlrev_b32 v{vA}, 9, v{vA}")
    E(f"v_lshl_add_u32 v{vA}, v{vA+1}, 3, v{vA}"); lanefield(vA,0,31,16,vA); E("v_cmp_gt_u32 vcc, 32, v255"); E(f"v_mov_b32 v{vA+1}, {BIG}"); E("s_nop 0"); E(f"v_cndmask_b32 v{vA+1}, v{vA+1}, v{vA}, vcc")
    E(f"s_mul_i32 s{sD}, s{sC}, {128*1280}")
    nop(8)
    for q in range(4):
        o=vO+16*q
        E(f"v_mov_b32 v{vM}, v{o+8}"); E(f"v_mov_b32 v{vM+1}, v{o+8}"); nop(2); E(f"v_permlane32_swap_b32 v{vM}, v{vM+1}"); E(f"v_rcp_f32 v{vM+1}, v{vM+1}"); E("s_nop 0")
        for j in range(12): E(f"v_mul_f32 v{o+j}, v{o+j}, v{vM+1}")
        pack(o,o,6); E(f"s_add_u32 s{sT}, s{sD}, {AO_OFF+q*32*1280}")
        bstore(2,vr(o,2),vA,WS,f"s{sT}",0,stf); bstore(2,vr(o+2,2),vA,WS,f"s{sT}",512,stf); bstore(2,vr(o+4,2),vA+1,WS,f"s{sT}",1024,stf)
def final(wait,late=1):
    E(f"s_lshl_b32 s{sC}, s{sH}, 2"); E(f"s_add_u32 s{sC}, s{sC}, s{sW}"); E(f"s_mul_i32 s{sD}, s{sR}, 20"); E(f"s_add_u32 s{sD}, s{sD}, s{sC}")
    E(f"s_lshl_b32 s{sB}, s{sD}, 14"); E(f"s_lshl_b32 s{sD}, s{sD}, 11"); E(f"s_add_u32 s{sD}, s{sD}, {AA_OFF}")
    lanefield(245,0,31,4); E(f"s_lshl_b32 s{sT}, s{sR}, 7"); E(f"s_add_u32 s{sT}, s{sT}, {G_OFF}"); bload(1,"v244",245,WS,f"s{sT}",0,"sc1")
    for u in range(2*late): bload(4,vr(8+4*u,4),vL16,WS,f"s{sD}",1024*u,"sc1")
    E(f"s_mul_i32 s{sA}, s{sR}, {32*1280}"); E(f"s_lshl_b32 s{sT}, s{sC}, 6"); E(f"s_add_u32 s{sA}, s{sA}, s{sT}")
    wait(); laneaddr(245,[(0,31,1280),(5,1,8)])
    for j in range(16):
        if j%4==0: E(f"s_add_u32 s{sT}, s{sB}, {OB_OFF+j*1024}")
        bload(4,vr(64+4*j,4),vL16,WS,f"s{sT}",(j%4)*1024,"sc1" if late else "sc1 nt")
    E("s_waitcnt vmcnt(0)"); obfin(64,8 if late else None,244,True)
    for u in range(2-2*late): bstore(4,vr(32+4*u,4),vL16,WS,f"s{sD}",1024*u,"sc1")
    for q in range(4*late): bstore(2,vr(8+2*q,2),245,OUT,f"s{sA}",16*q)
```

```python
import sys
from main1 import *
sN=6
def flag(dst,base,idx): E(f"s_lshl_b32 s{dst}, s{idx}, 7"); E(f"s_add_u32 s{dst}, s{dst}, {FLG(base)}")
def acquire(): E("buffer_inv sc1"); E("s_waitcnt vmcnt(0)")
if not ONE: K("init_kernel",256,0); init_part(); E("s_endpgm")
K("main_kernel",256,163840); ph(0)
if ONE: init_part()
E(f"s_and_b32 s{sX}, s2, 7"); E(f"s_lshr_b32 s{sI}, s2, 3"); E(f"s_mov_b32 s{sSpin}, 0x80000"); E(f"s_mov_b32 s{sTask}, s2")
E(f"s_cmp_lt_u32 s{sX}, 4"); E("s_cbranch_scc0 WORKER")
EX[0]="EX0"
xcc_store(1)
E(f"s_cmp_lt_u32 s{sI}, 8"); E("s_cbranch_scc0 BT0")
role_s(); L("EX0"); E("s_endpgm")
L("BT0"); common_setup(); E(f"s_sub_u32 s{sN}, s{sI}, 8")
L("BT1"); E(f"s_and_b32 s{sH}, s{sN}, 7"); E(f"s_lshl_b32 s{sT}, s{sX}, 3"); E(f"s_add_u32 s{sH}, s{sH}, s{sT}"); E(f"s_lshr_b32 s{sR}, s{sN}, 3")
XP=int(os.environ.get('XP','1'))
def h2():
    E(f"s_cmp_lt_u32 s{sN}, 24"); E("s_cbranch_scc1 BT6"); E(f"s_add_u32 s{sA}, s{sW}, 4"); E(f"s_mul_i32 s{sA}, s{sA}, 40960"); E(f"s_add_u32 s{sA}, s{sA}, {XF_OFF}"); xload(VM()); L("BT6")
def h7():
    E(f"s_cmp_lt_u32 s{sN}, 24"); E("s_cbranch_scc1 BT4")
    E(f"s_lshl_b32 s{sT}, s{sW}, 6"); E(f"v_add_u32 v64, s{sT}, v255"); E("v_mul_u32_u24 v64, 12288, v64"); E(f"s_mul_i32 s{sT}, s{sH}, 384"); E(f"s_add_u32 s{sT}, s{sT}, {384*12288}")
    E(f"s_cmp_lt_u32 s{sI}, 16"); E("s_cbranch_scc1 BT5")
    for j in range(3): bload(1,f"v{65+j}",64,WK,f"s{sT}",128*j)
    E("s_branch BT4"); L("BT5")
    for j in range(3): bload(1,f"v{65+j}",64,WQ,f"s{sT}",128*j)
    L("BT4")
flag(sFl,F_B,sX); task_b(lambda:(E(f"s_mov_b32 s{sF}, 0"),E(f"s_cmp_lt_u32 s{sN}, 24"),E("s_cbranch_scc0 BT3"),xcc_check(0),L("BT3")),(lambda:0) if XP else h2,h7)
if XP: E(f"s_cmp_lt_u32 s{sN}, 24"); E("s_cbranch_scc0 BT7"); E("s_waitcnt vmcnt(0)"); L("BT7"); h2(); E("s_waitcnt vmcnt(40)"); E("s_barrier"); signal(f"s{sFl}")
else: drain_signal(f"s{sFl}")
pass; ph(9)
E(f"s_cmp_lt_u32 s{sN}, 24"); E("s_cbranch_scc0 WORK2"); E(f"s_cmp_lt_u32 s{sI}, 28"); E("s_cbranch_scc0 SPARE")
E(f"s_lshl_b32 s{sT}, s{sW}, 6"); E(f"v_add_u32 v0, s{sT}, v255")
role_v()
def div5(): E(f"s_mul_i32 s{sR}, s{sN}, 52429"); E(f"s_lshr_b32 s{sR}, s{sR}, 18"); E(f"s_mul_i32 s{sT}, s{sR}, 5"); E(f"s_sub_u32 s{sH}, s{sN}, s{sT}")
def fbflag(): E(f"s_mul_i32 s{sT}, s{sT}, 5"); E(f"s_add_u32 s{sT}, s{sT}, s{sH}"); flag(sFl,F_FB,sT)
L("SPARE"); E(f"s_sub_u32 s{sN}, s{sI}, 24"); E(f"s_lshl_b32 s{sN}, s{sN}, 2"); E("s_branch W_A2")
L("WORKER"); EX[0]="EX1"
common_setup(); E(f"s_sub_u32 s{sX}, s{sX}, 4"); E(f"s_and_b32 s7, s{sI}, 15")
def jidx(c): E(f"s_lshr_b32 s{sN}, s{sI}, 4"); E(f"s_lshl_b32 s{sN}, s{sN}, 3"); E(f"s_add_u32 s{sN}, s{sN}, s7"); E(f"s_add_u32 s{sN}, s{sN}, {c}"); E("s_bitcmp1_b32 s7, 3")
jidx(16); E("s_cbranch_scc1 BT1")
L("WORK2")
E(f"s_lshl_b32 s{sH}, s{sX}, 3"); E(f"s_and_b32 s{sT}, s{sI}, 7"); E(f"s_add_u32 s{sH}, s{sH}, s{sT}"); E(f"s_bfe_u32 s{sR}, s{sI}, 0x10003")
E(f"s_lshl_b32 s{sT}, s{sX}, 4"); flag(sFl,F_QK,sT)
E(f"s_cmp_lt_u32 s{sI}, 16"); E("s_cbranch_scc0 W_VO")
loop_task(0); E("s_branch W_A")
L("W_VO"); E(f"s_add_u32 s{sFl}, s{sFl}, {128*(F_VO-F_QK)}"); loop_task(1); E("s_branch W_A")
L("EX1"); E("s_endpgm")
L("W_A"); ph(1); jidx(0); E("s_cbranch_scc1 W_AT")
L("W_A2"); E(f"s_lshl_b32 s{sH}, s{sX}, 1"); E(f"s_and_b32 s{sT}, s{sN}, 1"); E(f"s_add_u32 s{sH}, s{sH}, s{sT}"); E(f"s_lshr_b32 s{sR}, s{sN}, 1")
if os.environ.get("NOA"): E(f"s_cmp_lt_u32 s{sN}, 16"); E("s_cbranch_scc0 W_A3")
task_a(); L("W_A3"); flag(sFl,F_A,sH); drain_signal(f"s{sFl}"); ph(2)
E(f"s_cmp_lt_u32 s{sN}, 16"); E("s_cbranch_scc1 W_AT"); E(f"s_add_u32 s{sN}, s{sN}, 1"); E(f"s_and_b32 s{sT}, s{sN}, 3"); E("s_cbranch_scc1 W_A2")
E(f"s_lshl_b32 s{sN}, s{sX}, 2"); E(f"s_add_u32 s{sN}, s{sN}, s{sI}"); E(f"s_sub_u32 s{sN}, s{sN}, 28")
L("SP1"); div5(); E(f"s_add_u32 s{sFl2}, s{sR}, 4"); E(f"s_mov_b32 s{sFl}, {FLG(F_PR)}")
final(lambda:fwait(f"s{sFl}",f"s{sFl2}",0,12),0); E(f"s_lshr_b32 s{sT}, s{sR}, 2"); fbflag(); drain_signal(f"s{sFl}"); ph(8)
E(f"s_add_u32 s{sN}, s{sN}, 16"); E(f"s_cmp_lt_u32 s{sN}, {20*RT0}"); E("s_cbranch_scc1 SP1"); E("s_endpgm")
L("W_AT")
E(f"s_lshl_b32 s{sH}, s{sX}, 3"); E(f"s_lshr_b32 s{sT}, s{sI}, 2"); E(f"s_add_u32 s{sH}, s{sH}, s{sT}"); E(f"s_and_b32 s{sR}, s{sI}, 3")
E(f"s_lshr_b32 s{sT}, s{sH}, 2"); flag(sFl,F_A,sT); E(f"s_cmp_eq_u32 s{sW}, 0"); E("s_cbranch_scc0 W_AQ"); fwait(f"s{sFl}",16,0,2); acquire(); L("W_AQ"); E("s_barrier"); ph(3)
attention("","sc1"); common_setup(); flag(sFl,F_AT,sR); drain_signal(f"s{sFl}"); ph(4)
E(f"s_lshl_b32 s{sN}, s{sI}, 2"); E(f"s_add_u32 s{sN}, s{sN}, s{sX}"); E(f"s_cmp_lt_u32 s{sN}, 80"); E("s_cbranch_scc0 FIN0")
div5(); E(f"s_lshr_b32 s{sT}, s{sR}, 2"); flag(sFl,F_AT,sT); fwait(f"s{sFl}",32,0); E(f"s_mov_b32 s{sT}, s{sR}"); fbflag(); ph(5)
task_ao()
L("FIN0"); E(f"s_add_u32 s{sN}, s{sN}, {20*RT0-80}"); E(f"s_cmp_lt_u32 s{sN}, 320"); E("s_cbranch_scc0 EX2"); EX[0]="EX2"
div5(); E(f"s_lshr_b32 s{sT}, s{sR}, 2"); fbflag(); fwait(f"s{sFl}",1,0,4); flag(sFl,F_END,sH); E(f"s_add_u32 s{sFl2}, s{sR}, 4")
E(f"s_cmp_lt_u32 s{sR}, 60"); E(f"s_cselect_b32 s{sFl}, {FLG(F_PR)}, s{sFl}"); E(f"s_cselect_b32 s{sFl2}, s{sFl2}, 16")
final(lambda:(fwait(f"s{sFl}",f"s{sFl2}",0,2),ph(7))); ph(8); L("EX2"); E("s_endpgm")
emit()
```

```python
from base import *
from gemm import *
sS=70; sG=89; sPr=90; sPo=91; sX=4; sI=5; sM=6; sP=7; sQ=100; sU=101
import os
DIAG=os.environ.get("DIAG")
TR_OFF=WS_END
def stamp(k):
    if DIAG: E(f"s_memrealtime s[{72+2*k}:{73+2*k}]")
def stamp_init():
    if DIAG:
        E("s_lshl_b32 s88, s2, 2"); E(f"s_add_u32 s88, s88, s{sW}"); E("s_lshl_b32 s88, s88, 11"); E(f"s_add_u32 s88, s88, {TR_OFF}"); stamp(7)
        for k in range(7): E(f"s_mov_b32 s{72+2*k}, 0")
def stamp_acc(n):
    if DIAG:
        E("s_waitcnt lgkmcnt(0)")
        for k in range(8): E(f"v_mov_b32 v{k}, s{72+2*k}")
        E("v_mov_b32 v8, 0"); bstore(4,"v[0:3]",8,WS,"s88"); bstore(4,"v[4:7]",8,WS,"s88",16); E("s_add_u32 s88, s88, 32")
def stamp_out(): pass
def umax(dst,regs):
    regs=list(regs); E(f"v_max3_u32 v{dst}, v{regs[0]}, v{regs[1]}, v{regs[2]}"); regs=regs[3:]
    while len(regs)>=2: E(f"v_max3_u32 v{dst}, v{dst}, v{regs[0]}, v{regs[1]}"); regs=regs[2:]
    if regs: E(f"v_max_u32 v{dst}, v{dst}, v{regs[0]}")
def poll(loads,regs,tmp,sent=-1):
    uid[0]+=1; lb=f"PL{uid[0]}"
    L(lb); loads(); E(f"s_sub_u32 s{sSpin}, s{sSpin}, 1"); E(f"s_cbranch_scc1 {EX[0]}"); E("s_waitcnt vmcnt(0)")
    if len(regs)>1: umax(tmp,regs)
    else: tmp=regs[0]
    E(f"v_cmp_eq_u32 vcc, {sent}, v{tmp}"); E(f"s_cbranch_vccnz {lb}")
def poll2(ld,A,B,n,nl,tmp,gap,use):
    uid[0]+=1; lb=f"PQ{uid[0]}"
    ld(A); gap and E(f"s_sleep {gap}"); L(lb)
    for cur,oth in ((A,B),(B,A)):
        ld(oth); E(f"s_waitcnt vmcnt({nl})"); umax(tmp,range(cur,cur+n)); E(f"v_cmp_eq_u32 vcc, -1, v{tmp}")
        if cur==A: E(f"s_cbranch_vccz {lb}a"); E(f"s_sub_u32 s{sSpin}, s{sSpin}, 1"); E(f"s_cbranch_scc1 {EX[0]}")
        else: E(f"s_cbranch_vccnz {lb}")
    use(B); E(f"s_branch {lb}e"); L(lb+"a"); use(A); L(lb+"e")
def pub(f,c=True):
    uid[0]+=1; a=f"PB{uid[0]}"
    if c: E(f"s_cmp_eq_u32 s{sF}, 0")
    E(f"s_cbranch_scc1 {a}s"); f(""); E(f"s_branch {a}e"); L(a+"s"); f("sc1"); L(a+"e")
def xcc_addr(t):
    E(f"s_getreg_b32 s{sT}, hwreg(HW_REG_XCC_ID, 0, 4)"); E(f"s_add_u32 s{sT}, s{sT}, 1"); E(f"v_mov_b32 v{t}, s{sT}"); E(f"s_lshl_b32 s{sG}, s{sX}, 5")
def xcc_store(t):
    xcc_addr(t); E(f"v_lshlrev_b32 v{t+1}, 8, v0"); E(f"v_add_u32 v{t+1}, s{sI}, v{t+1}"); E(f"buffer_store_byte v{t},v{t+1},{S(DBG)},s{sG} offen sc1")
def xcc_check(t,lane=255):
    xcc_addr(t); E(f"v_and_b32 v{t+1}, 31, v{lane}")
    E("s_waitcnt vmcnt(0)"); poll(lambda:(E("s_sleep 4"),E(f"buffer_load_ubyte v{t+2},v{t+1},{S(DBG)},s{sG} offen sc1")),[t+2],t+3,0)
    E(f"v_cmp_ne_u32 vcc, v{t}, v{t+2}"); E("s_cmp_eq_u64 vcc, 0"); E(f"s_cselect_b32 s{sF}, 1, 0")
def mpoll(t,vA,vA2,vW,vW2,t2=None,gap=0):
    E(f"s_add_u32 s{sT}, s{sM}, 4096")
    def ld(t): bload(4,vr(t,4),vA,WS,f"s{sM}",0,"sc1"); bload(4,vr(t+4,4),vA,WS,f"s{sT}",0,"sc1"); bload(2,vr(t+8,2),vA2,WS,f"s{sM}",0,"sc1")
    def us(t): E(f"ds_write_b128 v{vW}, {vr(t,4)}"); E(f"ds_write_b128 v{vW}, {vr(t+4,4)} offset:4096"); E(f"ds_write_b64 v{vW2}, {vr(t+8,2)}")
    if t2 is None: poll(lambda:ld(t),range(t,t+10),t+10); us(t)
    else: poll2(ld,t,t2,10,3,t+10,gap,us)
    stamp(0); E("s_waitcnt lgkmcnt(0)"); E("s_barrier")
def maddr(vA,vA2,vW,vW2,vR,vI,MI):
    E(f"v_lshlrev_b32 v{vA}, 4, v0"); E(f"v_lshlrev_b32 v{vA2}, 3, v0"); E(f"v_add_u32 v{vA2}, 8192, v{vA2}")
    E(f"v_add_u32 v{vW}, {MI}, v{vA}"); E(f"v_add_u32 v{vW2}, {MI}, v{vA2}"); laneaddr(vR,[(0,63,16)],MI)
    lanefield(vI,3,1,0xAAAA); E(f"v_add_u32 v{vI}, 0x4444, v{vI}")
    E(f"s_mul_i32 s{sM}, s{sX}, 10240"); E(f"s_add_u32 s{sM}, s{sM}, {M_OFF}"); E(f"s_mov_b32 s{sS}, 0")
def smf(d,a,b,i): E(f"v_smfmac_f32_16x16x64_bf16 {vr(d,4)},{vr(a,4)},{b},v{i}")
def xred(v,t,op,modes):
    for m in modes:
        E(f"v_mov_b32 v{t}, v{v}"); nop(2); E(f"v_permlane{m}_swap_b32 v{v}, v{t}"); E(f"v_{op}_f32 v{v}, v{v}, v{t}")
def softmax(regs,mx,t,modes):
    r=list(regs); E(f"v_max3_f32 v{mx}, v{r[0]}, v{r[1]}, v{r[2]}"); k=r[3:]
    while len(k)>=2: E(f"v_max3_f32 v{mx}, v{mx}, v{k[0]}, v{k[1]}"); k=k[2:]
    if k: E(f"v_max_f32 v{mx}, v{mx}, v{k[0]}")
    xred(mx,t,"max",modes); E(f"v_mul_f32 v{mx}, s{sE}, v{mx}")
    for x in r: E(f"v_fma_f32 v{x}, v{x}, s{sE}, -v{mx}")
    for x in r: E(f"v_exp_f32 v{x}, v{x}")
    E(f"v_add_f32 v{mx}, v{r[0]}, v{r[1]}"); E(f"v_add_f32 v{t}, v{r[2]}, v{r[3]}")
    for j,x in enumerate(r[4:]): d=(mx,t)[j&1]; E(f"v_add_f32 v{d}, v{d}, v{x}")
    E(f"v_add_f32 v{mx}, v{mx}, v{t}"); xred(mx,t,"add",modes); E(f"v_rcp_f32 v{mx}, v{mx}"); E("s_nop 0")
    for x in r: E(f"v_mul_f32 v{x}, v{x}, v{mx}")
def flagchk(add,last,t):
    uid[0]+=1; lb=f"FC{uid[0]}"
    E(f"s_add_u32 s{sT}, s{sS}, {add}"); E(f"s_and_b32 s{sT}, s{sT}, {64+3}"); E(f"s_cbranch_scc1 {lb}")
    E(f"s_add_u32 s{sG}, s{sG}, 128"); fwait(f"s{sG}",8,t,1); L(lb)
def role_s(ldf=os.environ.get("VF","sc1_nt").replace("_"," "),stf="sc1"):
    MI=90112; QK=100352; KQ=108032
    vA,vA2,vW,vW2,vR,vI,vWL,vQW,vX,vK,vP1,vP2,vL,vSx,vMk=range(104,119)
    ACC=40; STG=64; PT=88
    stamp_init(); maddr(vA,vA2,vW,vW2,vR,vI,MI)
    E(f"s_lshl_b32 s{sH}, s{sX}, 3"); E(f"s_add_u32 s{sH}, s{sH}, s{sI}"); E(f"s_mov_b32 s{sE}, 0x{BSC:x}")
    E(f"v_lshlrev_b32 v{vL}, 4, v255"); E(f"s_mul_i32 s{sT}, s{sW}, {11*2048}"); E(f"v_add_u32 v{vWL}, s{sT}, v{vL}")
    laneaddr(vQW,[(0,15,240),(5,1,40),(4,1,8)],QK)
    E(f"s_and_b32 s{sA}, s{sW}, 1"); E(f"s_lshr_b32 s{sB}, s{sW}, 1"); E(f"s_mul_i32 s{sT}, s{sA}, {96*40}"); E(f"s_lshl_b32 s{sC}, s{sB}, 4"); E(f"s_add_u32 s{sT}, s{sT}, s{sC}"); E(f"v_add_u32 v{vQW}, s{sT}, v{vQW}")
    E(f"s_mul_i32 s{sQ}, s{sA}, {QX_OFF-KX_OFF}"); E(f"s_mul_i32 s{sT}, s{sH}, 12288"); E(f"s_add_u32 s{sQ}, s{sQ}, s{sT}"); E(f"s_add_u32 s{sQ}, s{sQ}, {KX_OFF}")
    E(f"s_mul_i32 s{sL}, s{sA}, 12288"); E(f"s_add_u32 s{sL}, s{sL}, {KQ}"); E(f"v_add_u32 v{vK}, s{sL}, v{vL}")
    E(f"s_mul_i32 s{sD}, s{sA}, {-11264&0xffffffff}"); E(f"s_add_u32 s{sD}, s{sD}, 24576")
    E(f"s_cmp_eq_u32 s{sW}, 1"); E("s_cbranch_scc1 S_A1")
    laneaddr(vX,[(5,1,640),(4,1,160),(2,3,40),(0,3,8)],QK)
    laneaddr(vP1,[(4,3,128),(0,7,16),(3,1,8)]); laneaddr(vP2,[(4,1,8),(0,7,16),(3,1,4)],512)
    E("v_cmp_gt_u32 vcc, 32, v255"); E(f"v_mov_b32 v{vSx}, {BIG}"); E(f"v_mov_b32 v1, 0xff800000"); E(f"v_cndmask_b32 v{vP2}, v{vP2}, v{vSx}, vcc"); E(f"v_cndmask_b32 v{vMk}, 0, v1, vcc")
    E(f"s_mul_i32 s{sP}, s{sH}, 640"); E(f"s_add_u32 s{sP}, s{sP}, {PM_OFF}"); E("s_branch S_A2")
    L("S_A1")
    laneaddr(vX,[(5,1,160),(2,3,40),(0,1,8)],QK+16); E(f"v_mov_b32 v{vP1}, v{vL}"); laneaddr(vP2,[(0,31,16),(5,1,8)],2048)
    E("v_cmp_gt_u32 vcc, 1, v255"); E(f"v_mov_b32 v{vSx}, {BIG}"); E(f"v_lshlrev_b32 v{vMk}, 7, v255"); E(f"v_cndmask_b32 v{vSx}, v{vSx}, v{vMk}, vcc"); E(f"v_mov_b32 v{vMk}, 1"); E(f"s_lshl_b32 s{sPr}, s{sX}, 7"); E(f"s_add_u32 s{sPr}, s{sPr}, {FLG(F_SE)}"); E(f"s_mul_i32 s{sP}, s{sH}, 2560"); E(f"s_add_u32 s{sP}, s{sP}, {PX_OFF}")
    L("S_A2")
    E(f"s_lshl_b32 s{sU}, s{sH}, 1"); E(f"s_add_u32 s{sU}, s{sU}, s{sA}"); E(f"s_lshl_b32 s{sU}, s{sU}, 10"); E(f"s_add_u32 s{sU}, s{sU}, {SX_OFF}")
    def kqdma():
        for a,n in ((0,4),(4096,4),(8192,4)):
            E(f"s_add_u32 m0, s{sL}, {a}"); E(f"s_add_u32 s{sT}, s{sQ}, {a}")
            for j in range(n): E(f"buffer_load_dwordx4 v{vL},{S(WS)},s{sT} offen offset:{j*1024} {ldf} lds")
        E(f"s_add_u32 m0, s{sL}, s{sD}"); E(f"s_add_u32 s{sQ}, s{sQ}, {32*12288}"); E(f"buffer_load_dwordx4 v{vL},{S(WS)},s{sU} offen {ldf} lds"); E(f"s_add_u32 s{sU}, s{sU}, {32*2048}")
    E(f"s_cmp_eq_u32 s{sB}, 0"); E(f"s_cselect_b32 s52, s{WQ}, s{WK}"); E(f"s_cselect_b32 s53, s{WQ+1}, s{WK+1}"); E("s_mov_b32 s54, 7864320"); E("s_mov_b32 s55, 0x20000")
    laneaddr(119,[(5,1,16*12288),(4,1,4*12288),(0,15,12)])
    E(f"s_mul_i32 s{sC}, s{sH}, 384"); E(f"s_mul_i32 s{sT}, s{sA}, 192"); E(f"s_add_u32 s{sC}, s{sC}, s{sT}")
    E(f"s_mov_b32 s{sA}, 0x05040100"); E(f"s_mov_b32 s{sB}, 0x07060302")
    place={}; na=nv=0; lds=[]
    for t in range(10):
        for n in range(6):
            if n==5 or (t,n)==(5,4): place[t,n]=('l',len(lds)); lds.append((t,n))
            elif na<32: place[t,n]=('a',8*na); na+=1
            else: place[t,n]=('v',120+8*nv); nv+=1
    assert nv==17 and len(lds)==11
    NP=10
    def wl(p):
        t,i=p>>3,p&7; row=64*t+32*(i>>2)+8*(i&1)+2*((i>>1)&1)
        for q in range(2): E(f"s_add_u32 s{sT}, s{sC}, {(row+q)*12288}"); bload(3,vr(8*(p%NP)+4*q,3),119,52,f"s{sT}",0,os.environ.get("SWF",""))
    for p in range(NP): wl(p)
    for p in range(80):
        t,i=p>>3,p&7; r=8*(p%NP); E(f"s_waitcnt vmcnt({2*min(NP-1,79-p)})")
        for n in range(6):
            k,b=place[t,n]; d={'a':96+n,'v':b+i,'l':80+8*(5-n)+i}[k]
            E(f"v_perm_b32 v{d}, v{r+4+(n>>1)}, v{r+(n>>1)}, s{(sA,sB)[n&1]}")
        for n in range(6):
            k,b=place[t,n]
            if k=='a': E(f"v_accvgpr_write_b32 a{b+i}, v{96+n}")
            if k=='l' and i&3==3: E(f"ds_write_b128 v{vWL}, {vr(80+8*(5-n)+i-3,4)} offset:{b*2048+(i>>2)*1024}")
        if p+NP<80: wl(p+NP)
    ph(2,72); E(f"v_lshrrev_b32 v76, 4, v{vL}"); gwait(72); xcc_check(72,76); ph(5,72); E(f"s_cmp_lt_u32 s{sW}, 2"); E("s_cbranch_scc1 S_LOOP")
    E(f"s_lshl_b32 s{sG}, s{sX}, 11"); E(f"s_add_u32 s{sG}, s{sG}, {FLG(F_QK)}"); fwait(f"s{sG}",8,72,1); ph(3,72); kqdma()
    TD=int(os.environ.get("TD","0"))
    E(f"s_mul_i32 s92, s{sH}, 640"); E(f"s_add_u32 s93, s92, {PM_OFF+TD*20480}"); E("s_lshl_b32 s92, s92, 1"); E(f"s_add_u32 s92, s92, {M_OFF+(TD+1)*40960}")
    E(f"s_cmp_eq_u32 s{sW}, 2"); E("s_cselect_b32 s93, s93, s92"); E("s_cselect_b32 s92, 1, 2"); E(f"s_mul_i32 s{sT}, s92, 80"); E("s_mul_i32 s92, s92, 20480")
    E(f"v_cmp_gt_u32 vcc, s{sT}, v{vL}"); E(f"v_lshlrev_b32 v72, 3, v{vL}"); E(f"v_mov_b32 v119, {BIG}"); E("v_cndmask_b32 v119, v119, v72, vcc")
    def fr(j): return 4*j if j<7 else (PT+4*(j-7) if j<11 else 28)
    def stg(j):
        for q in range(2): E(f"ds_read_b128 {vr(STG+8*(j%3)+4*q,4)}, v{vWL} offset:{j*2048+q*1024}")
    L("S_LOOP")
    for j in range(3): stg(j)
    for i in range(24): E(f"v_mov_b32 v{ACC+i}, 0")
    if int(os.environ.get("DS","20")): E(f"s_sleep {os.environ.get('DS',20)}")
    GM=int(os.environ.get("GM","-1"))
    mpoll(PT,vA,vA2,vW,vW2,28 if GM>=0 else None,GM); stamp(1)
    q=[]
    def mr(ts):
        for t in ts: E(f"ds_read_b128 {vr(4*t,4)}, v{vR} offset:{t*1024}"); q.append(('m',t))
    mr(range(7))
    E(f"s_xor_b32 s{sL}, s{sL}, s{sD}") if False else None
    def need(tag):
        if tag in q:
            i=len(q)-1-q[::-1].index(tag); E(f"s_waitcnt lgkmcnt({min(15,len(q)-1-i)})"); del q[:i+1]
    TV=int(os.environ.get("TV","0"))
    seq=[(t,n) for t in range(7) for n in range(6)]+[(t,n) for p in range(3) for t in range(7,10) for n in (2*p,2*p+1)]
    def qk(n):
        a=ACC+4*n
        return [f"v_permlane32_swap_b32 v{a+i}, v{a+4+i}" for i in range(4)]+[f"v_add_f32 v{a+i}, v{a+i}, v{a+4+i}" for i in range(4)]+\
               [f"v_cvt_pk_bf16_f32 v{a+i}, v{a+2*i}, v{a+2*i+1}" for i in range(2)]+[f"ds_write_b64 v{vQW}, {vr(a,2)} offset:{n*40}"]
    fill=[]; refill={}
    for g,(t,n) in enumerate(seq):
        need(('m',t)); k,b=place[t,n]
        if k=='l': need(('w',b)); refill[g+2]=b+3
        smf(ACC+4*n,4*t,{'a':ar(b,8),'v':vr(b,8),'l':vr(STG+8*(b%3),8)}[k],vI)
        if g==16: E("s_waitcnt vmcnt(0)"); mr((7,8,9))
        if refill.get(g,99)<11: stg(refill[g]); q.extend([('w',refill[g])]*2)
        for j in {20:[7,8],26:[9,10],30:[0,1],34:[2,3],38:[4],41:[5],44:[6]}.get(g,[]):
            E(f"ds_read_b128 {vr(fr(j),4)}, v{vK} offset:{j*1024}"); q.append(('k',j))
        if TV==1 and g in (48,49,50): E("s_nop 1")
        if TV==1 and g==51: fill=qk(0)+qk(2)
        for x in fill[:2]: E(x); q.extend([('x',0)] if x.startswith("ds_") else [])
        fill=fill[2:]
    def qkwrite():
        stamp(2); E(f"ds_read_b128 {vr(fr(11),4)}, v{vK} offset:{11*1024}")
        for x in (fill+["s_nop 0"] if TV==1 else qk(0)+qk(2))+qk(4): E(x)
    E(f"s_cmp_eq_u32 s{sW}, 0"); E("s_cbranch_scc0 S_W1")
    qkwrite()
    for i in range(4): E(f"v_mov_b32 v{80+i}, v{vMk}")
    E("s_waitcnt lgkmcnt(0)"); E("s_barrier"); stamp(3)
    for v in range(6):
        for rd in range(2): E(f"ds_read_b64_tr_b16 {vr(ACC+4*v+2*rd,2)}, v{vX} offset:{v*1280+rd*320}")
    for v in range(6):
        E(f"s_waitcnt lgkmcnt({10-2*v})"); x=vr(ACC+4*v,4)
        mfma16(72,vr(fr(2*v),4),x,"0" if v==0 else None); mfma16(76,vr(fr(2*v+1),4),x,"0" if v==0 else None); mfma16(80,x,x)
    stamp(4); nop(7)
    D8=" row_ror:8 row_mask:0xf bank_mask:0xc"
    for i in range(4): E(f"v_mov_b32_dpp v{72+i}, v{76+i}"+D8)
    for i in range(2): E(f"v_mov_b32_dpp v{80+i}, v{82+i}"+D8)
    E("v_max3_f32 v84, v72, v73, v74"); E("v_max3_f32 v85, v75, v80, v81"); E("v_max_f32 v86, v84, v85"); E("v_max_f32 v84, v84, v85")
    def red(op):
        nop(2); E("v_permlane32_swap_b32 v84, v86"); E(f"v_{op}_f32 v85, v84, v86"); E(f"v_{op}_f32 v84, v84, v86")
        nop(2); E("v_permlane16_swap_b32 v84, v85"); E(f"v_{op}_f32 v84, v84, v85"); nop(2)
        E(f"v_{op}_f32_dpp v84, v84, v84 row_ror:8 row_mask:0xf bank_mask:0xf")
    red("max"); E(f"v_mul_f32 v84, s{sE}, v84")
    R6=(72,73,74,75,80,81)
    for x in R6: E(f"v_fma_f32 v{x}, v{x}, s{sE}, -v84")
    for x in R6: E(f"v_exp_f32 v{x}, v{x}")
    E("v_add_f32 v84, v72, v73"); E("v_add_f32 v85, v74, v75"); E("v_add_f32 v87, v80, v81"); E("v_add_f32 v84, v84, v85"); E("v_add_f32 v86, v84, v87"); E("v_add_f32 v84, v84, v87")
    red("add"); E("v_rcp_f32 v84, v84"); E(f"s_cmp_eq_u32 s{sF}, 0")
    for x in R6: E(f"v_mul_f32 v{x}, v{x}, v84")
    cvt(72,72,73,"abs"); cvt(73,74,75,"abs"); cvt(74,80,81,"abs")
    pub(lambda f:(bstore(2,"v[72:73]",vP1,WS,f"s{sP}",0,f),bstore(1,"v74",vP2,WS,f"s{sP}",0,f)),False)
    E(f"s_add_u32 s{sP}, s{sP}, 20480"); E("s_branch S_END")
    L("S_W1"); E(f"s_cmp_eq_u32 s{sW}, 1"); E("s_cbranch_scc1 S_W1B")
    qkwrite(); E("s_waitcnt lgkmcnt(0)"); E("s_barrier")
    E(f"s_bitcmp1_b32 s{sS}, 0"); E(f"s_cselect_b32 s{sT}, -1, 1"); E(f"s_mul_i32 s{sT}, s{sT}, 26624"); E(f"s_add_u32 s{sL}, s{sL}, s{sT}"); flagchk(1,63,72); kqdma()
    if TD: bload(1,"v98",119,WS,"s93",0,"sc1"); E("s_add_u32 s93, s93, s92")
    E("s_branch S_END")
    L("S_W1B")
    qkwrite()
    E("s_waitcnt lgkmcnt(0)"); E("s_barrier"); stamp(3)
    for h in range(2):
        for u in range(6):
            for rd in range(2): E(f"ds_read_b64_tr_b16 {vr(ACC+4*u+2*rd,2)}, v{vX} offset:{(6*h+u)*640+rd*320}")
        for u in range(6): E(f"s_waitcnt lgkmcnt({10-2*u})"); mfma32(72,vr(ACC+4*u,4),vr(fr(6*h+u),4),"0" if h+u==0 else None)
        nop(8)
    stamp(4);
    for u in range(2): E(f"ds_read_b128 {vr(32+4*u,4)}, v{vK} offset:{12288+u*1024}")
    E("s_waitcnt lgkmcnt(0)")
    for j in range(8): E(f"v_lshlrev_b32 v{PT+2*j}, 16, v{32+j}"); E(f"v_and_b32 v{PT+2*j+1}, 0xffff0000, v{32+j}")
    softmax(list(range(PT,PT+16))+[72,73,74,75],76,77,(32,))
    pack(PT,PT,8); pack(72,72,2)
    pub(lambda f:([bstore(4,vr(PT+4*u,4),vP1,WS,f"s{sP}",u*1024,f) for u in range(2)],bstore(2,"v[72:73]",vP2,WS,f"s{sP}",0,f)))
    E(f"s_add_u32 s{sP}, s{sP}, {32*2560}"); E(f"s_cmp_lt_u32 s{sP}, {PX_OFF+4*81920}"); E(f"s_cselect_b32 s{sT}, 0, {4*81920}"); E(f"s_sub_u32 s{sP}, s{sP}, s{sT}");
    L("S_END"); stamp(5); stamp_acc(6)
    E(f"s_bitcmp1_b32 s{sS}, 0"); E(f"s_cselect_b32 s{sT}, -1, 1"); E(f"s_mul_i32 s{sT}, s{sT}, 26624"); E(f"v_add_u32 v{vK}, s{sT}, v{vK}")
    E(f"s_add_u32 s{sM}, s{sM}, 40960"); E(f"s_add_u32 s{sS}, s{sS}, 1"); E(f"s_cmp_lt_u32 s{sS}, 64"); E("s_cbranch_scc1 S_LOOP")
    E(f"s_cmp_eq_u32 s{sW}, 1"); E(f"s_cbranch_scc0 {EX[0]}"); E("s_waitcnt vmcnt(0)"); signal(f"s{sPr}",None,vMk,vSx); ph(4,72); E(f"s_branch {EX[0]}")
def role_v(ldf=os.environ.get("VF","sc1_nt").replace("_"," "),stf="sc1"):
    vA,vA2,vW,vW2,vR,vI,vZ,vZm,vXs,vXl,vMo,vL,vXs2,vXl2,vOwn,vPa,vPb=range(144,161)
    ACC=40; VO=64; VN=80; P=0; PT=116; ZM=128; D=132; XR=136
    stamp_init(); maddr(vA,vA2,vW,vW2,vR,vI,0)
    laneaddr(vZ,[(3,1,640),(4,3,128),(0,7,16)]); laneaddr(vZm,[(5,1,1280),(3,1,640),(0,7,16),(4,1,8)],512)
    laneaddr(vXs,[(3,1,81920),(4,3,64),(0,7,8)]); laneaddr(vXl,[(3,1,512),(4,3,64),(0,7,8)])
    laneaddr(vMo,[(0,7,16),(4,1,8),(5,1,4)]); E("v_and_b32 v1, 8, v255"); E("v_cmp_eq_u32 vcc, 0, v1"); E(f"v_mov_b32 v1, {BIG}"); E(f"v_lshlrev_b32 v{vL}, 4, v255"); E(f"v_cndmask_b32 v{vMo}, v1, v{vMo}, vcc")
    lanefield(2,3,1,1); E(f"v_add_u32 v3, 2, v2"); E("v_lshlrev_b32 v4, 1, v2"); E("v_add_u32 v5, 1, v4"); E(f"s_lshr_b32 s{sT}, s{sX}, 1")
    for d,src,c in ((vXs2,vXs,3),(vXs,vXs,2),(vXl2,vXl,5),(vXl,vXl,4)):
        E(f"v_cmp_eq_u32 vcc, s{sX}, v{c}"); nop(2); E(f"v_cndmask_b32 v{d}, v{src}, v1, vcc")
    E(f"v_cmp_eq_u32 vcc, s{sT}, v2"); nop(2); E(f"v_cndmask_b32 v{vOwn}, 0, -1, vcc")
    E(f"v_lshlrev_b32 v{vPa}, 4, v0"); E(f"v_lshlrev_b32 v{vPb}, 2, v0"); E(f"v_add_u32 v{vPb}, 4096, v{vPb}")
    E(f"s_sub_u32 s{sC}, s{sI}, 8"); E(f"s_lshl_b32 s{sC}, s{sC}, 2"); E(f"s_add_u32 s{sC}, s{sC}, s{sW}")
    E(f"s_mul_i32 s{sT}, s{sX}, 5120"); E(f"s_add_u32 s{sP}, s{sT}, {PM_OFF}"); E(f"s_mul_i32 s{sQ}, s{sC}, {ZJ}"); E(f"s_add_u32 s{sQ}, s{sQ}, s{sT}")
    E(f"s_lshl_b32 s{sT}, s{sC}, 10"); E(f"s_add_u32 s{sT}, s{sT}, {XB_OFF}"); E(f"s_lshl_b32 s{sA}, s{sX}, 8"); E(f"s_add_u32 s{sA}, s{sA}, s{sT}")
    E(f"s_mul_i32 s{sB}, s{sX}, 81920"); E(f"s_add_u32 s{sB}, s{sB}, s{sT}")
    E(f"s_lshl_b32 s{sU}, s{sC}, 7"); E(f"s_add_u32 s{sU}, s{sU}, 40960")
    E(f"s_mul_i32 s{sD}, s{sX}, 80"); E(f"s_add_u32 s{sD}, s{sD}, s{sC}"); E(f"s_mul_i32 s{sD}, s{sD}, {BWS}"); E(f"s_add_u32 s{sD}, s{sD}, {BW_OFF}")
    VP=168; ZP=184; vQ,vQm,vOb=188,190,166; PXL=32768; sPx=92; sOb=93
    [(laneaddr(vQ+g,[(3,1,2688-256*g),(4,3,512),(0,7,16)],PXL+128*g),laneaddr(vQm+g,[(5,1,5120),(3,1,2688-256*g),(0,7,16),(4,1,8)],PXL+2048+128*g)) for g in range(2)]; laneaddr(vOb,[(4,1,512),(3,1,128),(0,7,16),(5,1,8)])
    E(f"s_mul_i32 s{sL}, s{sW}, 5120"); E(f"s_mul_i32 s{sPx}, s{sX}, 20480"); E(f"s_add_u32 s{sPx}, s{sPx}, s{sL}"); E(f"s_add_u32 s{sPx}, s{sPx}, {PX_OFF+2*81920}"); E(f"s_add_u32 s{sL}, s{sL}, {PXL}")
    E(f"s_lshl_b32 s{sOb}, s{sC}, 2"); E(f"s_add_u32 s{sOb}, s{sOb}, s{sX}"); E(f"s_lshl_b32 s{sOb}, s{sOb}, 10"); E(f"s_add_u32 s{sOb}, s{sOb}, {OB_OFF-3*327680}")
    PF=os.environ.get('PF','sc1')
    def pxdma():
        E(f"s_mov_b32 m0, s{sL}"); E("s_nop 0")
        for j in range(4): E(f"buffer_load_dwordx4 v{vL},{S(WS)},s{sPx} offen offset:{j*1024} {PF} lds")
        E(f"s_add_u32 m0, s{sL}, 1024"); E(f"s_add_u32 s{sT}, s{sPx}, 1024"); E(f"s_add_u32 s{sPx}, s{sPx}, 81920"); E(f"buffer_load_dwordx4 v{vL},{S(WS)},s{sT} offen offset:3072 {PF} lds")
        E(f"s_cmp_lt_u32 s{sPx}, {PX_OFF+4*81920}"); E(f"s_cselect_b32 s{sT}, 0, {4*81920}"); E(f"s_sub_u32 s{sPx}, s{sPx}, s{sT}")
    def shift():
        for i in range(20): E(f"v_mov_b32 v{96+i}, v{VP+i}")
        for i in range(16): E(f"v_mov_b32 v{VP+i}, v{VO+i}")
        for i in range(4): E(f"v_mov_b32 v{ZP+i}, v{ZM+i}")
    def ob(hs=(0,1)):
        def rd(h,t):
            for g in range(2):
                if t<4: E(f"ds_read_b128 {vr(20*g+4*t,4)}, v{vQ+g} offset:{t*5120+h*256}")
                else:
                    for q in range(2): E(f"ds_read_b64 {vr(20*g+16+2*q,2)}, v{vQm+g} offset:{q*10240+h*256}")
        for t in range(5): rd(hs[0],t)
        for h in hs:
            more=h!=hs[-1]
            for t in range(5):
                E(f"s_waitcnt lgkmcnt({(10 if t<4 else 8) if more else (10-2*t if t<4 else 0)})")
                for g in range(2): mfma16(ACC+8*h+4*g,vr(96+4*t,4),vr(20*g+4*t,4),"0" if t==0 else None)
                if more: rd(h+1,t)
        nop(8 if len(hs)==1 else 4)
        for h in hs:
            for d in (ACC+8*h,ACC+8*h+4): E(f"v_permlane32_swap_b32 v{d}, v{d+2}"); E(f"v_permlane32_swap_b32 v{d+1}, v{d+3}")
        nop(1)
        for h in hs:
            a=ACC+8*h; b=a+4
            for i in range(2):
                E(f"v_add_f32_dpp v{56+2*h+i}, v{b+2+i}, v{a+i} row_ror:8 row_mask:0xf bank_mask:0x3"); E(f"v_add_f32_dpp v{56+2*h+i}, v{b+i}, v{a+2+i} row_ror:8 row_mask:0xf bank_mask:0xc")
    def obst():
        for u in range(2): bstore(2,vr(56+2*u,2),vOb,WS,f"s{sOb}",256*u,os.environ.get("OF","sc1").replace("_"," "))
        E(f"s_add_u32 s{sOb}, s{sOb}, 327680")
    E(f"v_mov_b32 v161, v{vFl}"); E("s_cmp_eq_u32 s2, 64"); E(f"s_cselect_b32 s{sT}, 0, {BIG}"); E(f"v_or_b32 v163, s{sT}, v{vFl}"); E("v_mov_b32 v164, -1"); E("v_mov_b32 v165, -1"); E(f"s_mov_b32 s{sPr}, {FLG(F_PR)}")
    E(f"s_lshl_b32 s{sG}, s{sX}, 7"); E(f"s_add_u32 s{sG}, s{sG}, {FLG(F_B)}"); fwait(f"s{sG}",40,0,2); ph(2,0)
    for j in range(80):
        if j%4==0: E(f"s_add_u32 s{sT}, s{sD}, {j*1024}")
        bload(4,ar(4*j,4) if j<64 else vr(192+4*(j-64),4),vL,WS,f"s{sT}",(j%4)*1024,os.environ.get("BWF","sc1"))
    E(f"s_lshl_b32 s{sG}, s{sX}, 11"); E(f"s_add_u32 s{sG}, s{sG}, {FLG(F_VO)}"); fwait(f"s{sG}",8,0,1); ph(3,0)
    for t in range(4): bload(4,vr(VN+4*t,4),vZ,WS,f"s{sQ}",t*1280,ldf)
    FA=int(os.environ.get("FA","1"))
    E("s_waitcnt vmcnt(0)"); L("V_LOOP"); FA and flagchk(1,63,PT); shift()
    for i in range(16): E(f"v_mov_b32 v{VO+i}, v{VN+i}")
    for i in range(16): E(f"v_mov_b32 v{ACC+i}, 0")
    if int(os.environ.get("DM","0")): E(f"s_sleep {os.environ['DM']}")
    mpoll(PT,vA,vA2,vW,vW2); stamp(1)
    for t in range(10): E(f"ds_read_b128 {vr(4*t,4)}, v{vR} offset:{t*1024}")
    m=len(out)
    E(f"s_add_u32 s{sT}, s{sQ}, {Z_S}")
    for t in range(4): bload(4,vr(VN+4*t,4),vZ,WS,f"s{sT}",t*1280,ldf)
    E(f"s_bitcmp1_b32 s{sS}, 1"); E(f"s_cselect_b32 s{sPo}, -1, 1"); E(f"s_mul_i32 s{sPo}, s{sPo}, 655360"); E(f"s_add_u32 s{sPo}, s{sPo}, s{sA}"); E(f"s_add_u32 s{sT}, s{sPo}, 163840")
    XP=os.environ.get("XPO","sc1").replace("_"," "); bstore(2,"v[164:165]",vXs,WS,f"s{sPo}",0,XP); bstore(2,"v[164:165]",vXs2,WS,f"s{sT}",0,XP)
    obst(); E(f"v_mov_b32 v162, s{sS}"); bstore(1,"v162",163,WS,f"s{sPr}",0,"sc1"); pxdma()
    fill=out[m:]; del out[m:]; EXP=os.environ.get('EXP','')
    fill=[x for x in fill if not(('v' in EXP and x.startswith('buffer_load_dwordx4 v[')) or ('s' in EXP and 'v[5' in x and x.startswith('buffer_store')) or ('p' in EXP and x.endswith('lds')))]
    def fl():
        while fill:
            x=fill.pop(0); E(x)
            if x.startswith("buffer"): break
    for _ in range(int(os.environ.get('NF','4'))): fl()
    for k in range(10):
        E(f"s_waitcnt lgkmcnt({9-k})")
        for t in range(4):
            f=t*10+k; smf(ACC+4*t,4*k,ar(8*f,8) if f<32 else vr(192+8*(f-32),8),vI)
            if t&1: fl()
    fl(); assert not fill
    E(f"s_bitcmp1_b32 s{sS}, 0"); E(f"s_cselect_b32 s{sT}, -1, 1"); E(f"s_mul_i32 s{sT}, s{sT}, 10240")
    for r in (vW,vW2,vR): E(f"v_add_u32 v{r}, s{sT}, v{r}")
    nop(3)
    for a in (ACC,ACC+8):
        for i in range(4): E(f"v_permlane32_swap_b32 v{a+i}, v{a+4+i}")
        for i in range(4): E(f"v_add_f32 v{a+i}, v{a+i}, v{a+4+i}")
    pack(ZM,ACC,2); pack(ZM+2,ACC+8,2)
    EXP=os.environ.get('EXP','')
    OBM=int(os.environ.get("OBM","0"))
    if OBM: E("s_waitcnt vmcnt(9)"); E("s_barrier"); ob((0,) if OBM==1 else (0,1))
    if not FA: flagchk(2,62,PT)
    stamp(2)
    if int(os.environ.get("DP","0")): E(f"s_sleep {os.environ['DP']}")
    def ld():
        for t in range(4): bload(4,vr(P+4*t,4),vZ,WS,f"s{sP}",t*1280,"sc1")
        bload(2,vr(P+16,2),vZm,WS,f"s{sP}",0,"sc1"); bload(2,vr(P+18,2),vZm,WS,f"s{sP}",2560,"sc1")
    CP=os.environ.get("CP","1")=="1"
    if not CP: poll(ld,range(P,P+20),PT); stamp(3)
    pl=lambda r:(bload(4,vr(r,4),vPa,WS,f"s{sP}",0,"sc1"),bload(1,vr(r+4),vPb,WS,f"s{sP}",0,"sc1"))
    pu=lambda r:(E(f"ds_write_b128 v{vPa}, {vr(r,4)} offset:20480"),E(f"ds_write_b32 v{vPb}, v{r+4} offset:20480"))
    GP=int(os.environ.get("GP","2"))
    if GP<0: poll(lambda:pl(PT),range(PT,PT+5),PT+5); pu(PT)
    else: poll2(pl,PT,PT+6,5,2,PT+5,GP,pu)
    if CP: E(f"s_cmp_eq_u32 s{sS}, 63"); E("s_waitcnt lgkmcnt(0)"); E("s_barrier"); E("s_cbranch_scc1 V_END"); stamp(3)
    for t in range(4*CP): E(f"ds_read_b128 {vr(P+4*t,4)}, v{vZ} offset:{20480+t*1280}")
    for t in range(2*CP): E(f"ds_read_b64 {vr(P+16+2*t,2)}, v{vZm} offset:{20480+t*2560}")
    for t in range(4): E(f"s_waitcnt lgkmcnt({5-t})"); mfma16(D,vr(VO+4*t,4),vr(P+4*t,4),"0" if t==0 else None)
    E("s_waitcnt lgkmcnt(0)"); mfma16(D,vr(ZM,4),vr(P+16,4))
    E(f"s_add_u32 s{sT}, s{sA}, 163840"); nop(7)
    E(f"v_permlane32_swap_b32 v{D}, v{D+2}"); E(f"v_permlane32_swap_b32 v{D+1}, v{D+3}"); nop(1)
    for i in range(2):
        E(f"v_add_f32_dpp v{XR+i}, v{D+2+i}, v{D+i} row_ror:8 row_mask:0xf bank_mask:0x3"); E(f"v_add_f32_dpp v{XR+i}, v{D+i}, v{D+2+i} row_ror:8 row_mask:0xf bank_mask:0xc")
    for i in range(2): E(f"v_min_u32 v{XR+i}, -2, v{XR+i}")
    XS=os.environ.get("XS","sc1").replace("_"," "); XL=os.environ.get("XL","sc1").replace("_"," ")
    bstore(2,vr(XR,2),vXs,WS,f"s{sA}",0,XS); bstore(2,vr(XR,2),vXs2,WS,f"s{sT}",0,XS)
    for i in range(2): E(f"v_and_b32 v{D+i}, v{XR+i}, v{vOwn}")
    stamp(4)
    if OBM<2: ob((1,) if OBM else (0,1))
    if int(os.environ.get("DX","0")): E(f"s_sleep {os.environ.get('DX',3)}")
    xl=lambda r:(bload(2,vr(r,2),vXl,WS,f"s{sB}",0,XL),bload(2,vr(r+2,2),vXl2,WS,f"s{sB}",256,XL))
    xu=lambda r:[E(f"v_add_f32 v{XR+2+i}, v{r+i}, v{r+2+i}") for i in range(2)]
    GX=int(os.environ.get("GX","4"))
    if GX<0: poll(lambda:xl(0),range(4),PT); xu(0)
    else: poll2(xl,0,4,4,2,PT,GX,xu)
    stamp(5)
    for i in range(2): E(f"v_add_f32 v{XR+2+i}, v{XR+2+i}, v{D+i}")
    E(f"s_add_u32 s{sT}, s{sM}, s{sU}"); nop(1)
    for i in range(2): E(f"v_add_f32_dpp v{XR+4+i}, v{XR+2+i}, v{XR+2+i} row_ror:8 row_mask:0xf bank_mask:0xf")
    cvt(XR+6,XR+4,XR+5); E(f"v_min_u32 v{XR+6}, -2, v{XR+6}")
    pub(lambda f: bstore(1,f"v{XR+6}",vMo,WS,f"s{sT}",0,f))
    stamp(6); stamp_acc(7)
    for r,c in ((sM,40960),(sP,20480),(sQ,Z_S),(sS,1)): E(f"s_add_u32 s{r}, s{r}, {c}")
    E(f"s_and_b32 s{sT}, s{sS}, 3"); E(f"s_cselect_b32 s{sT}, 1, -3"); E(f"s_mul_i32 s{sT}, s{sT}, 327680"); E(f"s_add_u32 s{sA}, s{sA}, s{sT}"); E(f"s_add_u32 s{sB}, s{sB}, s{sT}")
    E("s_branch V_LOOP")
    L("V_END"); E(f"s_add_u32 s{sL}, s{sL}, 20480"); pxdma(); E(f"s_lshl_b32 s{sG}, s{sX}, 7"); E(f"s_add_u32 s{sG}, s{sG}, {FLG(F_SE)}")
    L("V_E1"); ob(); obst(); E(f"s_cmp_eq_u32 s{sS}, 65"); E("s_cbranch_scc1 V_E2")
    shift(); [E(f"v_add_u32 v{vQ+g}, 20480, v{vQ+g}") for g in range(4)]; E(f"s_add_u32 s{sS}, s{sS}, 1"); E(f"s_cmp_eq_u32 s{sS}, 65"); E("s_cbranch_scc1 V_E3")
    fwait(f"s{sG}",8,PT,1); E(f"s_add_u32 s{sL}, s{sL}, 20480"); pxdma(); E("s_barrier"); E("s_branch V_E1")
    L("V_E3"); E("s_waitcnt vmcnt(2)"); E("s_barrier"); E("s_branch V_E1")
    L("V_E2"); E(f"s_lshr_b32 s{sT}, s{sC}, 4"); E(f"s_lshl_b32 s{sT}, s{sT}, 7"); E(f"s_add_u32 s{sT}, s{sT}, {FLG(F_END)}"); E("s_waitcnt vmcnt(0)"); E("v_mov_b32 v162, 1"); E("s_barrier"); signal(f"s{sT}",None,162,161); ph(4,0); E(f"s_branch {EX[0]}")
```

```python
from base import *
SLOT=24576; NSLOT=5
vRING=192; NRING=8
vRB=224
vD1=230; vD2=231; vXO=232; vL16=233; vZO=234; vT=236; vFl=238; vOne=239; sBn=90; sAn=91; sFl=92; sFl2=93
import os
STF=os.environ.get("STF","sc1").replace("_"," ")
XG=int(os.environ.get("XG","1"))
GD=os.environ.get("GD")
def gst(k):
    if GD: E(f"s_memrealtime s[{72+2*k}:{73+2*k}]")
def gout():
    if GD:
        E("s_waitcnt lgkmcnt(0)")
        for k in range(4): E(f"v_mov_b32 v{240+k}, s{72+2*k}")
        E("v_mov_b32 v244, 0"); E(f"s_lshl_b32 s88, s{sTask}, 4"); E(f"s_add_u32 s88, s88, {WS_END+(4<<20)}"); bstore(4,"v[240:243]",244,WS,"s88"); E(f"s_add_u32 s{sTask}, s{sTask}, 256")
def ring_bases(b,hi_mul):
    laneaddr(b,[(5,1,hi_mul),(2,3,64),(4,1,32),(0,3,8)])
    E(f"v_add_u32 v{b+1}, {2*SLOT}, v{b}"); E(f"v_add_u32 v{b+2}, {4*SLOT}, v{b}")
def dma_off(dst,RS,TPS):
    laneaddr(dst,[(2,7,RS),(5,1,TPS),(0,3,16)])
    E(f"s_mul_i32 s{sT}, s{sW}, {8*RS}"); E(f"v_add_u32 v{dst}, s{sT}, v{dst}")
def signal(soff,vm=None,one=vOne,fl=vFl):
    E(f"buffer_atomic_add v{one},v{fl},{S(WS)},{soff} offen sc1")
    if vm: vm.op('f')
def drain_signal(soff):
    E("s_waitcnt vmcnt(0)"); E("s_barrier"); signal(soff)
def run_stages(vm,stages,pre=None,loop=None):
    n=len(stages)
    def dma(i):
        if i>=n and not loop: return []
        r=[]; i%=n
        for j,(srd,voff,sb,c) in enumerate(stages[i]['dma']):
            def f(i=i,j=j,srd=srd,voff=voff,sb=sb,c=c):
                E(f"s_add_u32 m0, s{sL}, {(i%NSLOT)*SLOT+j*1024}"); E(f"s_add_u32 s{sT}, s{sb}, {c}")
                E(f"buffer_load_dwordx4 v{voff},{S(srd)},s{sT} offen lds"); vm.op(('d',i))
            r.append(f)
        return r
    gst(0); E("s_barrier")
    for f in dma(0)+dma(1): f()
    if pre: pre()
    for f in dma(2)+dma(3): f()
    flat=[(i,k) for i in range(n) for k in range(len(stages[i]['mm']))]
    LA=NRING-2
    def rd(g):
        i,k=flat[g]; rb,o0,o1,_=stages[i]['mm'][k]; sl=i%NSLOT; r=vRING+4*(g%NRING)
        for q,o in enumerate((o0,o1)):
            E(f"ds_read_b64_tr_b16 {vr(r+2*q,2)},v{rb+sl//2} offset:{(sl%2)*SLOT+o}")
    BK=int(os.environ.get("BK","1"))
    def body():
        pend=[]; N=len(flat)
        for g,(i,k) in enumerate(flat):
            nk=len(stages[i]['mm'])
            if k==0:
                if not BK or (g==0 and not loop):
                    vm.wait(('d',0 if BK else ((i+1)%n if loop else min(i+1,n-1))))
                    if i==0: vm.wait('x')
                    E("s_barrier")
                pend=dma(i+4)
                if i==0:
                    gst(1)
                    if not(BK and loop):
                        for q in range(LA): rd(q)
            if BK and k==nk-LA and (loop or i+1<n): vm.wait(('d',(i+1)%n)); E("s_barrier")
            if g+LA<N: rd(g+LA)
            elif BK and loop: rd(g+LA-N)
            left=LA if BK and loop else min(LA,N-1-g)
            E(f"s_waitcnt lgkmcnt({min(2*left,15)})")
            stages[i]['mm'][k][3](vr(vRING+4*(g%NRING),4))
            if pend and (k%2==1 if BK else k%3==1): pend.pop(0)()
            for f in stages[i].get('post',{}).get(k,[]): f()
            if k==nk-1: assert not pend
        gst(2)
    if loop and BK:
        vm.all(); E("s_barrier"); ph(8); E(f"s_mov_b32 s{sPh}, 0")
        for q in range(LA): rd(q)
        assert len(flat)%NRING==0
    if loop:
        vm.all(); m=len(out); body(); del out[m:]; L(loop)
    body()
def xload(vm,fl=IFL):
    for t in range(40):
        if t%4==0: E(f"s_add_u32 s{sT}, s{sA}, {t*1024}")
        bload(4,ar(4*t,4),vL16,WS,f"s{sT}",(t%4)*1024,fl); vm.op('x')
def rowbase(base=0):
    E(f"s_lshl_b32 s{sC}, s{sR}, 2"); E(f"s_add_u32 s{sC}, s{sC}, s{sW}"); E(f"s_mul_i32 s{sA}, s{sC}, {32*1280}")
    if base: E(f"s_add_u32 s{sA}, s{sA}, {base}")
def s1_stages(NT,KS,RS,pairs,swap=()):
    st=[]; NP=NT//2
    for i in range(40//KS):
        d=[(pairs[j%NP][0],vD1,sB,(i*KS*16+32*(j//NP))*RS+pairs[j%NP][1]) for j in range(NP*KS//2)]
        mm=[]
        for kk in range(KS):
            for f in range(NT):
                o=2*(kk&1)*6144+(NP*(kk>>1)+(f>>1))*1024+(f&1)*512; t=i*KS+kk
                def em(w,f=f,t=t):
                    a,b=(w,ar(4*t,4)) if f not in swap else (ar(4*t,4),w)
                    mfma32(16*f,a,b,"0" if t==0 else None)
                mm.append((vRB,o,o+256,em))
        st.append(dict(dma=d,mm=mm))
    return st
def s2_stages(vm,JS,KSTR,perm,loc=False):
    st=[]
    def epi(i):
        acc=32*(i&1)
        for f in range(2):
            for u in range(2):
                for j in range(4): cvt(144+8*f+4*u+perm[j],acc+16*f+8*u+2*j,acc+16*f+8*u+2*j+1)
            E(f"s_add_u32 s{sT}, s{sD}, {(2*i+f)*4*JS}")
            lb=f"BS{i}_{f}"
            if loc:
                E(f"s_cmp_eq_u32 s{sF}, 0"); E(f"s_cbranch_scc1 {lb}")
                for u in range(2): bstore(4,vr(144+8*f+4*u,4),vZO,WS,f"s{sT}",2*u*KSTR)
                E(f"s_branch {lb}e"); L(lb)
            for u in range(2): bstore(4,vr(144+8*f+4*u,4),vZO,WS,f"s{sT}",2*u*KSTR,STF); vm.op('st')
            if loc: L(lb+"e")
    for i in range(10):
        d=[(WO,vD2,sB2,32*j*1280+i*128) for j in range(6)]
        mm=[]
        for u in range(12):
            for f in range(2):
                o=2*(u&1)*6144+(u>>1)*1024+f*512
                def em(w,f=f,u=u,i=i): mfma32(32*(i&1)+16*f,vr(96+4*u,4),w,"0" if u==0 else None)
                mm.append((vRB+3,o,o+6144,em))
        post={}
        if i>0: post[8]=[lambda i=i: epi(i-1)]
        st.append(dict(dma=d,mm=mm,post=post))
    return st,epi
def common_setup():
    ring_bases(vRB,6144); ring_bases(vRB+3,256)
    E(f"v_lshlrev_b32 v{vL16}, 4, v255")
    dma_off(vD2,1280,64)
    E(f"s_mul_i32 s{sL}, s{sW}, 6144")
    E(f"v_or_b32 v{vOne}, s{sW}, v255"); E(f"v_cmp_eq_u32 vcc, 0, v{vOne}"); E(f"v_mov_b32 v{vOne}, 1"); E(f"v_mov_b32 v{vFl}, {BIG}"); E(f"v_cndmask_b32 v{vFl}, v{vFl}, 0, vcc")
def pack(dst,src,n):
    for j in range(n): cvt(dst+j,src+2*j,src+2*j+1)
def qk_epi(vm):
    nop(12); pack(0,0,96); nop(2)
    for u in range(12): mfma32(96,vr(48+4*u,4),vr(4*u,4),"0" if u==0 else None)
    E(f"s_lshl_b32 s{sE}, s{sC}, 5"); E(f"s_add_u32 s{sE}, s{sE}, s{sH}"); E(f"s_mul_i32 s{sD}, s{sE}, 12288")
    laneaddr(vT,[(3,1,1024),(5,1,256),(4,1,128),(0,7,16)])
    for u in range(12):
        if u%4==0: E(f"s_add_u32 s{sT}, s{sD}, {KX_OFF+u*1024}")
        bstore(4,vr(48+4*u,4),vT,WS,f"s{sT}",(u&2)*1024+(u&1)*512,STF); vm.op('st')
    for u in range(12):
        if u%4==0: E(f"s_add_u32 s{sT}, s{sD}, {QX_OFF+u*1024}")
        bstore(4,vr(4*u,4),vL16,WS,f"s{sT}",(u%4)*1024,STF); vm.op('st')
    E(f"s_lshl_b32 s{sT}, s{sE}, 11"); E(f"s_add_u32 s{sT}, s{sT}, {SX_OFF}")
    lanefield(vT,5,1,4); E(f"v_and_b32 v{vT+1}, 31, v255"); E(f"v_sub_u32 v{vT}, v{vT+1}, v{vT}"); E(f"v_mov_b32 v{vT+1}, 0xff800000")
    for i in range(16):
        E(f"v_cmp_le_i32 vcc, {8*(i>>2)+(i&3)}, v{vT}"); nop(2); E(f"v_cndmask_b32 v{96+i}, v{vT+1}, v{96+i}, vcc")
    pack(96,96,8)
    for q in range(2): bstore(4,vr(96+4*q,4),vL16,WS,f"s{sT}",q*1024,STF); vm.op('st')
def loop_task(vo,first):
    vm=VM(); dma_off(vD1,12288,64); rowbase(XF_OFF); E(f"s_mul_i32 s{sB}, s{sH}, 384"); E(f"s_mov_b32 s{sFl2}, {FLG(255)}")
    def top():
        E(f"s_add_u32 s{sT}, s{sPh}, 1"); E(f"s_min_u32 s{sT}, s{sT}, 7"); E(f"s_and_b32 s86, s{sT}, 6"); E("s_lshl_b32 s86, s86, 1"); E("s_lshr_b32 s87, s7, 2"); E("s_add_u32 s87, s87, s86")
        E(f"s_and_b32 s{sT}, s{sT}, 1"); E(f"s_lshl_b32 s{sT}, s{sT}, 2"); E(f"s_and_b32 s86, s{sH}, {0x1b}"); E(f"s_or_b32 s86, s86, s{sT}")
        E(f"s_bitcmp1_b32 s{sPh}, 0"); E(f"s_cselect_b32 s{sT}, 3, 1"); E(f"s_add_u32 s{sT}, s{sR}, s{sT}"); E(f"s_cmp_lt_u32 s{sPh}, 3"); E(f"s_cselect_b32 s86, s{sH}, s86"); E(f"s_cselect_b32 s87, s{sT}, s87")
        E(f"s_sub_u32 s{sT}, s87, s{sR}"); E(f"s_mul_i32 s{sT}, s{sT}, {128*1280}"); E(f"s_add_u32 s{sAn}, s{sA}, s{sT}")
        if vo: E(f"s_mul_i32 s{sD}, s{sC}, {Z_S}"); E(f"s_mul_i32 s{sBn}, s{sH}, 640"); E(f"s_add_u32 s{sD}, s{sD}, s{sBn}"); E(f"s_mul_i32 s{sB2}, s{sH}, {192*1280}")
    def nb(): E(f"s_mul_i32 s{sB}, s86, 384")
    def xl(t):
        def f():
            E(f"s_cmp_eq_u32 s{sAn}, s{sA}"); E(f"s_cbranch_scc1 XL{vo}_{t}"); E(f"s_add_u32 s{sT}, s{sAn}, {t*1024}")
            for q in range(2): bload(4,ar(4*t+4*q,4),vL16,WS,f"s{sT}",1024*q,IFL)
            L(f"XL{vo}_{t}")
        return f
    if vo:
        laneaddr(vZO,[(3,3,ZJ),(5,1,128),(0,7,16)])
        a=s1_stages(6,4,12288,[(WV,0),(WV,128),(WV,256)]); b,epi=s2_stages(vm,ZJ,128,[0,1,2,3]); st=a+b
        for t in range(0,40,2): st[1+t//4].setdefault('post',{}).setdefault(14+2*(t&2),[]).append(xl(t))
        a[-1]['post'][23]=[lambda:(nop(12),pack(96,0,48))]
        b[9]['post'][23]=[lambda:(nop(12),epi(9))]
    else:
        st=s1_stages(12,2,12288,[(WQ,0),(WQ,128),(WQ,256),(WK,0),(WK,128),(WK,256)])
        for i in range(20): st[i]['post']={23:[xl(2*i)]}
        st[19]['post'][23].append(lambda: qk_epi(vm))
    TC=os.environ.get("TC","")
    E(f"v_lshlrev_b32 v246, 7, v255")
    if vo: laneaddr(247,[(2,15,ZJ),(0,3,128)])
    def touch(j):
        def f():
            if j==5:
                E(f"s_min_u32 s{sT}, s{sPh}, 4"); E(f"s_lshl_b32 s{sT}, s{sT}, 5"); E(f"s_add_u32 s{sT}, s{sT}, s5"); E(f"s_lshl_b32 s{sT}, s{sT}, 2"); E(f"s_add_u32 s{sT}, s{sT}, s4")
                E(f"s_lshl_b32 s{sT}, s{sT}, 2"); E(f"s_add_u32 s{sT}, s{sT}, s{sW}"); E(f"s_lshl_b32 s{sT}, s{sT}, 13"); E(f"s_add_u32 s{sT}, s{sT}, {OB_OFF}")
            elif vo: E(f"s_add_u32 s{sT}, s{sD}, {16*j*ZJ}")
            else:
                E(f"s_lshl_b32 s{sT}, s{sC}, 5"); E(f"s_add_u32 s{sT}, s{sT}, s{sH}"); E(f"s_mul_i32 s{sT}, s{sT}, {12288 if j<4 else 2048}"); E(f"s_add_u32 s{sT}, s{sT}, {(KX_OFF,KX_OFF+4096,QX_OFF,QX_OFF+4096,SX_OFF)[j]}")
            bload(1,"v245",247 if vo and j<5 else 246,WS,f"s{sT}",0,"sc1")
        return f
    for j in range(6):
        if ('o' if j==5 else 'z') in TC: st[1+j].setdefault('post',{}).setdefault(13,[]).append(touch(j))
    st[0].setdefault('post',{})[0]=[top]
    st[15]['post'].setdefault(23,[]).append(nb); st[10]['post'].setdefault(0,[]).append(lambda: gst(0)); st[19]['post'].setdefault(22,[]).append(lambda: gst(3))
    st[3].setdefault('post',{}).setdefault(19,[]).append(lambda: signal(f"s{sFl2}",vm))
    lb=f"TL{vo}"
    run_stages(vm,st,lambda:(E("s_bitcmp1_b32 s7, 3"),E(f"s_cbranch_scc1 {lb}x"),first(vm),L(lb+"x")),loop=lb)
    E(f"s_lshl_b32 s{sFl2}, s{sR}, 7"); E(f"s_add_u32 s{sFl2}, s{sFl2}, s{sFl}"); E(f"s_mov_b32 s{sH}, s86"); E(f"s_mov_b32 s{sR}, s87"); E(f"s_mov_b32 s{sA}, s{sAn}")
    E(f"s_lshl_b32 s{sC}, s{sR}, 2"); E(f"s_add_u32 s{sC}, s{sC}, s{sW}"); gout()
    E(f"s_cmp_lt_u32 s{sPh}, 2"); E(f"s_cbranch_scc0 {lb}n"); drain_signal(f"s{sFl2}"); E(f"s_mov_b32 s{sFl2}, {FLG(255)}"); L(lb+"n")
    E(f"s_add_u32 s{sPh}, s{sPh}, 1"); E(f"s_cmp_lt_u32 s{sPh}, 8"); E(f"s_cbranch_scc1 {lb}")
    drain_signal(f"s{sFl2}")
def task_b(chk,h2,h7):
    vm=VM(); E(f"s_mul_i32 s{sB2}, s{sH}, {192*1280}")
    laneaddr(vD1,[(0,31,12288),(5,1,8)]); laneaddr(vZO,[(3,3,BWS),(5,1,256),(0,7,16)])
    E(f"s_lshl_b32 s{sC}, s{sR}, 2"); E(f"s_add_u32 s{sC}, s{sC}, s{sW}")
    E(f"s_mul_i32 s{sA}, s{sC}, {32*12288}"); E(f"s_mul_i32 s{sT}, s{sH}, 384"); E(f"s_add_u32 s{sA}, s{sA}, s{sT}")
    E(f"s_lshr_b32 s{sD}, s{sH}, 3"); E(f"s_mul_i32 s{sD}, s{sD}, {80*BWS}")
    E(f"s_bfe_u32 s{sT}, s{sH}, 0x20001"); E(f"s_mul_i32 s{sT}, s{sT}, 20480"); E(f"s_add_u32 s{sD}, s{sD}, s{sT}")
    E(f"s_and_b32 s{sT}, s{sH}, 1"); E(f"s_lshl_b32 s{sT}, s{sT}, 7"); E(f"s_add_u32 s{sD}, s{sD}, s{sT}")
    E(f"s_lshl_b32 s{sT}, s{sC}, 10"); E(f"s_add_u32 s{sD}, s{sD}, s{sT}"); E(f"s_add_u32 s{sD}, s{sD}, {BW_OFF}")
    def pre():
        for u in range(24): bload(2,vr(96+2*u,2),vD1,WV,f"s{sA}",16*u); vm.op('x')
        chk()
    b,epi=s2_stages(vm,BWS,256,[0,2,1,3],os.environ.get('BL','1')=='1')
    b[2]['post'][20]=[h2]; b[int(os.environ.get('H7','5'))]['post'][21]=[h7]
    run_stages(vm,b,pre); nop(12); epi(9)
def task_a():
    vm=VM(); dma_off(vD1,3840,40); rowbase(XF_OFF); E(f"s_mul_i32 s{sB}, s{sH}, 160")
    run_stages(vm,s1_stages(12,2,3840,[(WQKV,1280*m+80*p) for m in range(3) for p in range(2)],swap=(8,9,10,11)),lambda: xload(vm))
    E("v_cmp_gt_u32 vcc, 32, v255"); E(f"v_and_b32 v{vT}, 31, v255"); E(f"v_cmp_eq_u32 s[94:95], 20, v{vT}")
    E(f"s_mov_b32 s{sE}, 0x{QSC:x}"); E(f"v_mov_b32 v{vT}, 0x3f803f80")
    E(f"s_lshl_b32 s{sD}, s{sH}, 8"); E(f"s_add_u32 s{sD}, s{sD}, s{sC}"); E(f"s_lshl_b32 s{sD}, s{sD}, 11")
    nop(8)
    for f in range(12):
        b=16*f
        if f<4:
            for j in range(12): E(f"v_mul_f32 v{b+j}, s{sE}, v{b+j}")
        if f<8:
            pack(b,b,6); E(f"v_cndmask_b32 v{b+4}, 0, v{b+4}, vcc"); E(f"v_cndmask_b32 v{b+5}, 0, v{b+5}, vcc")
            E(f"v_mov_b32 v{b+6}, 0"); E(f"v_mov_b32 v{b+7}, 0")
        else:
            pack(b,b,8)
            for j in range(8): E(f"v_cndmask_b32 v{b+j}, v{b+j}, v{vT}, s[94:95]")
        E(f"s_add_u32 s{sT}, s{sD}, {AQ_OFF+(f>>2)*AQ_SZ+(f&3)*64*2048}")
        for u in range(2): bstore(4,vr(b+4*u,4),vL16,WS,f"s{sT}",u*1024,STF)
def scale8(d,src,g,t):
    for j in range(8):
        E(f"v_lshlrev_b32 v{t}, 16, v{src+j}"); E(f"v_and_b32 v{t+1}, 0xffff0000, v{src+j}"); E(f"v_mul_f32 v{t}, v{g}, v{t}"); E(f"v_mul_f32 v{t+1}, v{g}, v{t+1}"); cvt(d+j,t,t+1)
def add8(d,a,b,t):
    for j in range(8):
        E(f"v_lshlrev_b32 v{t}, 16, v{a+j}"); E(f"v_and_b32 v{t+1}, 0xffff0000, v{a+j}"); E(f"v_lshlrev_b32 v{t+2}, 16, v{b+j}"); E(f"v_and_b32 v{t+3}, 0xffff0000, v{b+j}")
        E(f"v_add_f32 v{t}, v{t}, v{t+2}"); E(f"v_add_f32 v{t+1}, v{t+1}, v{t+3}"); cvt(d+j,t,t+1)
def task_ao():
    vm=VM(); dma_off(vD1,1280,64); rowbase(AO_OFF); E(f"s_lshl_b32 s{sB}, s{sH}, 8")
    E(f"s_mul_i32 s{sD}, s{sC}, 5"); E(f"s_add_u32 s{sD}, s{sD}, s{sH}"); E(f"s_lshl_b32 s{sD}, s{sD}, 13"); E(f"s_add_u32 s{sD}, s{sD}, {AA_OFF}"); E(f"s_add_u32 s{sE}, s{sD}, 4096")
    def pre():
        xload(vm,"sc1")
        lanefield(245,0,31,4); E(f"s_lshl_b32 s{sT}, s{sC}, 7"); E(f"s_add_u32 s{sT}, s{sT}, {G_OFF}"); bload(1,"v244",245,WS,f"s{sT}",0,"sc1"); vm.op('t')
    st=s1_stages(4,4,1280,[(AWO,0),(AWO,128)])
    run_stages(vm,st,pre)
    laneaddr(245,[(0,31,1280),(5,1,8)]); E(f"s_mul_i32 s{sA}, s{sC}, {32*1280}"); E(f"s_add_u32 s{sA}, s{sA}, s{sB}")
    nop(6); pack(0,0,32)
    for f in range(4): scale8(8*f,8*f,244,240)
    E(f"s_cmp_lt_u32 s{sR}, {RT0}"); E("s_cbranch_scc1 AO_C")
    for u in range(8): bstore(4,vr(4*u,4),vL16,WS,f"s{(sD,sE)[u>>2]}",(u%4)*1024,STF)
    drain_signal(f"s{sFl}"); ph(6); E("s_endpgm")
    L("AO_C"); fwait(f"s{sFl}",4,240)
    for u in range(8): bload(4,vr(64+4*u,4),vL16,WS,f"s{(sD,sE)[u>>2]}",(u%4)*1024,"sc1")
    for f in range(4):
        E(f"s_waitcnt vmcnt({6+2*f})"); add8(8*f,8*f,64+8*f,240)
        for q in range(4): bstore(2,vr(8*f+2*q,2),245,OUT,f"s{sA}",64*f+16*q)
    ph(6); E("s_endpgm")
def obfin(b,a,g,first):
    if first: E(f"v_sub_f32 v{g}, 1.0, v{g}"); cvt(g,g,g); E(f"v_lshlrev_b32 v{g}, 16, v{g}")
    for q in range(4):
        r=b+16*q
        for d,c in ((0,4),(8,12),(0,8)):
            for k in (0,2): E(f"v_pk_add_f32 {vr(r+d+k,2)}, {vr(r+d+k,2)}, {vr(r+c+k,2)}")
        pack(32+2*q,r,2)
    scale8(32,32,g,240); a is None or add8(a,a,32,240)
import struct,math
def f2u(x): return struct.unpack("<I",struct.pack("<f",x))[0]
LOG2E=math.log2(math.e)
QSC=f2u(20**-0.5*LOG2E); BSC=f2u(192**-0.5*LOG2E)
```

```python
from base import *
from gemm import *
def init_part():
    E("s_lshl_b32 s65, s2, 12"); E("v_lshlrev_b32 v1, 4, v0"); E("v_add_u32 v1, s65, v1")
    for i in range(4): E(f"v_mov_b32 v{4+i}, -1")
    n=SENT_END-SENT_BEG; full=n>>20; rem=n-(full<<20)
    for it in range(full):
        E(f"s_mov_b32 s{sT}, {SENT_BEG+(it<<20)}"); bstore(4,"v[4:7]",1,WS,f"s{sT}",0,IFL)
    E(f"v_cmp_gt_u32 vcc, {rem}, v1"); E(f"v_mov_b32 v2, {BIG}"); E(f"s_mov_b32 s{sT}, {SENT_BEG+(full<<20)}"); E("v_cndmask_b32 v2, v2, v1, vcc")
    bstore(4,"v[4:7]",2,WS,f"s{sT}",0,IFL)
    E("v_cmp_gt_u32 vcc, 0x8000, v1"); E(f"v_mov_b32 v2, {BIG}")
    for i in range(4): E(f"v_mov_b32 v{8+i}, 0")
    E("v_cndmask_b32 v2, v2, v1, vcc"); E(f"s_mov_b32 s{sT}, {FL_OFF}"); bstore(4,"v[8:11]",2,WS,f"s{sT}",0,IFL)
    E("v_lshrrev_b32 v2, 4, v1"); E("v_and_b32 v3, 7, v2"); E("v_mul_u32_u24 v3, 1280, v3"); E("v_lshrrev_b32 v2, 3, v2"); E("v_lshl_add_u32 v3, v2, 4, v3")
    E("v_cmp_gt_u32 vcc, 10240, v1"); E(f"v_mov_b32 v2, {BIG}"); E("s_nop 0"); E("v_cndmask_b32 v3, v2, v3, vcc"); E("v_cndmask_b32 v2, v2, v1, vcc")
    bload(4,"v[12:15]",3,MEM0,"0")
    laneaddr(16,[(0,31,8)]); lanefield(17,5,1,1280,16)
    E("s_lshl_b32 s65, s2, 2"); E(f"s_add_u32 s65, s65, s{sW}"); E(f"s_mul_i32 s{sT}, s65, 2560")
    for i in range(5): bload(2,vr(20+2*i,2),17,X,f"s{sT}",256*i); bload(2,vr(30+2*i,2),16,GW,"0",256*i)
def init2(full=False):
    WM=0
    if full: E("s_waitcnt vmcnt(0)")
    E(f"s_waitcnt vmcnt({10+8*WM})")
    for i in range(4): E(f"v_min_u32 v{12+i}, -2, v{12+i}")
    for x in range(4): E(f"s_mov_b32 s{sT}, {M_OFF+x*10240}"); bstore(4,"v[12:15]",2,WS,f"s{sT}",0,IFL)
    laneaddr(45,[(1,15,512),(5,1,16),(0,1,8)]); E("s_lshr_b32 s68, s65, 4"); E("s_mul_i32 s68, s68, 40960"); E(f"s_and_b32 s{sT}, s65, 15"); E(f"s_lshl_b32 s{sT}, s{sT}, 5"); E(f"s_add_u32 s68, s68, s{sT}")
    E(f"s_waitcnt vmcnt({4+8*WM})"); E("v_mov_b32 v40, 0")
    for i in range(5): E(f"s_add_u32 s{sT}, s68, {XF_OFF+8192*i}"); bstore(2,vr(20+2*i,2),45,WS,f"s{sT}",0,IFL)
    for i in range(10):
        E(f"v_lshlrev_b32 v41, 16, v{20+i}"); E(f"v_lshlrev_b32 v42, 16, v{30+i}"); E(f"v_and_b32 v43, 0xffff0000, v{20+i}"); E(f"v_and_b32 v44, 0xffff0000, v{30+i}")
        E("v_mul_f32 v41, v41, v42"); E("v_mul_f32 v43, v43, v44"); cvt(41,41,43)
        E("v_lshlrev_b32 v42, 16, v41"); E("v_and_b32 v41, 0xffff0000, v41"); E("v_add_f32 v40, v40, v42"); E("v_add_f32 v40, v40, v41")
    for o in (0x041F,0x081F,0x101F,0x201F,0x401F):
        E(f"ds_swizzle_b32 v41, v40 offset:{o}"); E("s_waitcnt lgkmcnt(0)"); E("v_add_f32 v40, v40, v41")
    cvt(40,40,40); E("v_lshlrev_b32 v40, 16, v40"); E(f"v_mul_f32 v40, 0x{f2u(-LOG2E):x}, v40"); E("v_exp_f32 v40, v40"); E("s_nop 0")
    E("v_add_f32 v40, 1.0, v40"); E("v_rcp_f32 v40, v40"); E("s_nop 0"); cvt(40,40,40); E("v_lshlrev_b32 v40, 16, v40")
    lanefield(41,5,1,4); E("s_lshl_b32 s65, s65, 3"); E(f"s_add_u32 s65, s65, {G_OFF}")
    bstore(1,"v40",41,WS,"s65",0,IFL)
def arrive(t,drain=True):
    E(f"v_or_b32 v{t}, s{sW}, v255"); E(f"v_cmp_eq_u32 vcc, 0, v{t}"); E(f"v_mov_b32 v{t}, {BIG}"); E(f"v_mov_b32 v{t+1}, 1"); E(f"v_cndmask_b32 v{t}, v{t}, 0, vcc")
    if drain: E("s_waitcnt vmcnt(0)"); E("s_barrier")
    E(f"buffer_atomic_add v{t+1},v{t},{S(DBG)},0 offen offset:128 sc1")
def attention(ldf="",stf=""):
    vQ=0; vC=32; vO=96; vS=160; vK=192; vP=224; vA=250; vM=240
    E(f"s_lshl_b32 s{sA}, s{sH}, 17"); E(f"s_add_u32 s{sA}, s{sA}, {AQ_OFF}")
    E(f"s_lshl_b32 s{sC}, s{sR}, 2"); E(f"s_add_u32 s{sC}, s{sC}, s{sW}"); E(f"s_lshl_b32 s{sT}, s{sC}, 13"); E(f"s_add_u32 s{sT}, s{sT}, s{sA}")
    E(f"v_lshlrev_b32 v{vA}, 4, v255")
    for i in range(8):
        if i==4: E(f"s_add_u32 s{sT}, s{sT}, 4096")
        bload(4,vr(vQ+4*i,4),vA,WS,f"s{sT}",(i%4)*1024,ldf)
    vKA=vA+1
    E(f"s_lshl_b32 s{sL}, s{sW}, 12"); E(f"s_add_u32 s{sB}, s{sA}, s{sL}"); E(f"v_mov_b32 v{vKA}, v{vA}")
    for c in range(8):
        E(f"s_add_u32 m0, s{sL}, {c*16384}"); E(f"s_add_u32 s{sT}, s{sB}, {AQ_SZ+c*16384}")
        for i in range(4): E(f"buffer_load_dwordx4 v{vA},{S(WS)},s{sT} offen offset:{i*1024} lds")
    for i in range(4): E(f"v_mov_b32 v{vM+i}, 0xff800000")
    for i in range(32): E(f"v_mov_b32 v{vC+32+i}, 0xff800000")
    def kr(r,n,o):
        for i in range(n): E(f"ds_read_b128 {vr(r+4*i,4)}, v{vKA} offset:{o+i*1024}")
    def p1(cur,nxt,o):
        kr(nxt,4,o); E("s_waitcnt lgkmcnt(4)")
        for n in range(8):
            kb,q=n>>2,n&3; d=vC+16*q; pq=(n-2)&3; p=vC+16*pq
            mfma32(d,vr(cur+8*kb,4),vr(vQ+8*q,4),"0")
            for j in range(4): E(f"v_max3_f32 v{vM+pq}, v{vM+pq}, v{p+2*j}, v{p+2*j+1}")
            mfma32(d,vr(cur+8*kb+4,4),vr(vQ+8*q+4,4))
            for j in range(4,8): E(f"v_max3_f32 v{vM+pq}, v{vM+pq}, v{p+2*j}, v{p+2*j+1}")
    for hf,(w,n) in enumerate(((24,3),(0,13))):
        E(f"s_waitcnt vmcnt({w})"); E("s_barrier"); hf or kr(vK,4,0)
        E(f"s_mov_b32 s{sE}, {n}"); L(f"AT_P1{hf}"); p1(vK,vK+16,4096); p1(vK+16,vK,8192); E(f"v_add_u32 v{vKA}, 8192, v{vKA}")
        E(f"s_sub_u32 s{sE}, s{sE}, 1"); E(f"s_cmp_lg_u32 s{sE}, 0"); E(f"s_cbranch_scc1 AT_P1{hf}")
    E(f"s_add_u32 s{sB}, s{sA}, {2*AQ_SZ}"); E(f"s_add_u32 s{sB2}, s{sB}, {63*2048}"); E(f"v_mov_b32 v{vKA}, v{vA}"); E("s_waitcnt lgkmcnt(0)")
    def ld2(r,so,o):
        kr(r,2,o)
        for i in range(2): bload(4,vr(r+8+4*i,4),vA,WS,so,i*1024,ldf)
    ld2(vK,f"s{sB}",0); nop(8)
    for q in (2,3):
        for j in range(8): E(f"v_max3_f32 v{vM+q}, v{vM+q}, v{vC+16*q+2*j}, v{vC+16*q+2*j+1}")
    for q in range(4):
        E(f"v_mov_b32 v{vM+4}, v{vM+q}"); nop(2); E(f"v_permlane32_swap_b32 v{vM+q}, v{vM+4}"); E(f"v_max_f32 v{vM+q}, v{vM+q}, v{vM+4}")
        for j in range(16): E(f"v_sub_f32 v{vC+16*q+j}, 0, v{vM+q}"); E(f"v_mov_b32 v{vO+16*q+j}, 0")
    E("s_waitcnt vmcnt(0) lgkmcnt(0)")
    mfma32(vS,vr(vK,4),vr(vQ,4),vr(vC,16)); mfma32(vS,vr(vK+4,4),vr(vQ+4,4)); nop(8)
    def p2(cur,nxt,o):
        E(f"s_add_u32 s{sB}, s{sB}, 2048"); E(f"s_min_u32 s{sT}, s{sB}, s{sB2}"); ld2(nxt,f"s{sT}",o)
        for q in range(4):
            s=vS+16*(q&1); d=vS+16*((q+1)&1); nq=(q+1)&3; k=cur if q<3 else nxt; P=vP+8*(q&1)
            if q==3: E("s_waitcnt lgkmcnt(0)")
            mfma32(d,vr(k,4),vr(vQ+8*nq,4),vr(vC+16*nq,16))
            for j in range(4): E(f"v_exp_f32 v{s+j}, v{s+j}")
            mfma32(d,vr(k+4,4),vr(vQ+8*nq+4,4))
            for j in range(4,9): E(f"v_exp_f32 v{s+j}, v{s+j}")
            pack(P,s,4)
            for j in range(9,11): E(f"v_exp_f32 v{s+j}, v{s+j}")
            if q==0: E("s_waitcnt vmcnt(2)")
            mfma32(vO+16*q,vr(cur+8,4),vr(P,4))
            for j in range(11,16): E(f"v_exp_f32 v{s+j}, v{s+j}")
            E("s_nop 0"); pack(P+4,s+8,4); nop(2)
            mfma32(vO+16*q,vr(cur+12,4),vr(P+4,4))
    E(f"s_mov_b32 s{sE}, 32"); L("AT_P2"); p2(vK,vK+16,2048); p2(vK+16,vK,4096); E(f"v_add_u32 v{vKA}, 4096, v{vKA}")
    E(f"s_sub_u32 s{sE}, s{sE}, 1"); E(f"s_cmp_lg_u32 s{sE}, 0"); E("s_cbranch_scc1 AT_P2")
    E(f"s_mul_i32 s{sT}, s{sH}, 5"); E(f"v_lshrrev_b32 v{vA}, 5, v255"); E(f"v_add_u32 v{vA}, s{sT}, v{vA}"); E(f"v_and_b32 v{vA+1}, 1, v{vA}"); E(f"v_lshrrev_b32 v{vA}, 1, v{vA}"); E(f"v_lshlrev_b32 v{vA}, 9, v{vA}")
    E(f"v_lshl_add_u32 v{vA}, v{vA+1}, 3, v{vA}"); lanefield(vA,0,31,16,vA); E("v_cmp_gt_u32 vcc, 32, v255"); E(f"v_mov_b32 v{vA+1}, {BIG}"); E("s_nop 0"); E(f"v_cndmask_b32 v{vA+1}, v{vA+1}, v{vA}, vcc")
    E(f"s_mul_i32 s{sD}, s{sC}, {128*1280}")
    nop(8)
    for q in range(4):
        o=vO+16*q
        E(f"v_mov_b32 v{vM}, v{o+8}"); E(f"v_mov_b32 v{vM+1}, v{o+8}"); nop(2); E(f"v_permlane32_swap_b32 v{vM}, v{vM+1}"); E(f"v_rcp_f32 v{vM+1}, v{vM+1}"); E("s_nop 0")
        for j in range(12): E(f"v_mul_f32 v{o+j}, v{o+j}, v{vM+1}")
        pack(o,o,6); E(f"s_add_u32 s{sT}, s{sD}, {AO_OFF+q*32*1280}")
        bstore(2,vr(o,2),vA,WS,f"s{sT}",0,stf); bstore(2,vr(o+2,2),vA,WS,f"s{sT}",512,stf); bstore(2,vr(o+4,2),vA+1,WS,f"s{sT}",1024,stf)
def final(wait,late=1):
    E(f"s_lshl_b32 s{sC}, s{sH}, 2"); E(f"s_add_u32 s{sC}, s{sC}, s{sW}"); E(f"s_mul_i32 s{sD}, s{sR}, 20"); E(f"s_add_u32 s{sD}, s{sD}, s{sC}")
    E(f"s_lshl_b32 s{sB}, s{sD}, 14"); E(f"s_lshl_b32 s{sD}, s{sD}, 11"); E(f"s_add_u32 s{sD}, s{sD}, {AA_OFF}")
    lanefield(245,0,31,4); E(f"s_lshl_b32 s{sT}, s{sR}, 7"); E(f"s_add_u32 s{sT}, s{sT}, {G_OFF}"); bload(1,"v244",245,WS,f"s{sT}",0,"sc1")
    for u in range(2*late): bload(4,vr(8+4*u,4),vL16,WS,f"s{sD}",1024*u,"sc1")
    E(f"s_mul_i32 s{sA}, s{sR}, {32*1280}"); E(f"s_lshl_b32 s{sT}, s{sC}, 6"); E(f"s_add_u32 s{sA}, s{sA}, s{sT}")
    wait(); laneaddr(245,[(0,31,1280),(5,1,8)])
    for j in range(16):
        if j%4==0: E(f"s_add_u32 s{sT}, s{sB}, {OB_OFF+j*1024}")
        bload(4,vr(64+4*j,4),vL16,WS,f"s{sT}",(j%4)*1024,"sc1" if late else "sc1 nt")
    E("s_waitcnt vmcnt(0)"); obfin(64,8 if late else None,244,True)
    for u in range(2-2*late): bstore(4,vr(32+4*u,4),vL16,WS,f"s{sD}",1024*u,"sc1")
    for q in range(4*late): bstore(2,vr(8+2*q,2),245,OUT,f"s{sA}",16*q)
```

```python
import sys
from main1 import *
sN=6
def flag(dst,base,idx): E(f"s_lshl_b32 s{dst}, s{idx}, 7"); E(f"s_add_u32 s{dst}, s{dst}, {FLG(base)}")
def acquire(): E("buffer_inv sc1"); E("s_waitcnt vmcnt(0)")
if not ONE: K("init_kernel",256,0); init_part(); init2(); E("s_waitcnt vmcnt(0)"); E("s_endpgm")
K("main_kernel",256,163840); ph(0)
if ONE: init_part()
E(f"s_and_b32 s{sX}, s2, 7"); E(f"s_lshr_b32 s{sI}, s2, 3"); E(f"s_mov_b32 s{sSpin}, 0x80000"); E(f"s_mov_b32 s{sTask}, s2")
E(f"s_cmp_lt_u32 s{sX}, 4"); E("s_cbranch_scc0 WORKER")
EX[0]="EX0"
xcc_store(62)
E(f"s_cmp_lt_u32 s{sI}, 8"); E("s_cbranch_scc0 BT0")
ONE and (init2(True),arrive(1))
role_s(); L("EX0"); E("s_endpgm")
L("BT0"); common_setup(); E(f"s_sub_u32 s{sN}, s{sI}, 8")
L("BT1"); E(f"s_and_b32 s{sH}, s{sN}, 7"); E(f"s_lshl_b32 s{sT}, s{sX}, 3"); E(f"s_add_u32 s{sH}, s{sH}, s{sT}"); E(f"s_lshr_b32 s{sR}, s{sN}, 3")
XP=int(os.environ.get('XP','3'))
def h2():
    E(f"s_cmp_lt_u32 s{sN}, 24"); E("s_cbranch_scc1 BT6"); E(f"s_add_u32 s{sA}, s{sW}, 8"); E(f"s_mul_i32 s{sA}, s{sA}, 40960"); E(f"s_add_u32 s{sA}, s{sA}, {XF_OFF}"); xload(VM()); L("BT6")
def h7():
    E(f"s_cmp_lt_u32 s{sN}, 24"); E("s_cbranch_scc1 BT4")
    E(f"s_lshl_b32 s{sT}, s{sW}, 6"); E(f"v_add_u32 v64, s{sT}, v255"); E("v_mul_u32_u24 v64, 12288, v64"); E(f"s_mul_i32 s{sT}, s{sH}, 384"); E(f"s_add_u32 s{sT}, s{sT}, {384*12288}")
    E(f"s_cmp_lt_u32 s{sI}, 16"); E("s_cbranch_scc1 BT5")
    for j in range(3): bload(1,f"v{65+j}",64,WK,f"s{sT}",128*j)
    E("s_branch BT4"); L("BT5")
    for j in range(3): bload(1,f"v{65+j}",64,WQ,f"s{sT}",128*j)
    L("BT4")
flag(sFl,F_B,sX); task_b(lambda:(E(f"s_mov_b32 s{sF}, 0"),E(f"s_cmp_lt_u32 s{sN}, 24"),E("s_cbranch_scc0 BT3"),xcc_check(62),L("BT3"),ONE and init2(True)),lambda:ONE and arrive(70,False),h7 if XP!=2 else lambda:0); gwait(70)
if XP>=2: drain_signal(f"s{sFl}"); XP==2 and h7(); h2()
elif XP: E(f"s_cmp_lt_u32 s{sN}, 24"); E("s_cbranch_scc0 BT7"); E("s_waitcnt vmcnt(0)"); L("BT7"); h2(); E("s_waitcnt vmcnt(40)"); E("s_barrier"); signal(f"s{sFl}")
else: drain_signal(f"s{sFl}")
pass; ph(9)
E(f"s_cmp_lt_u32 s{sN}, 24"); E("s_cbranch_scc0 WORK2"); E(f"s_cmp_lt_u32 s{sI}, 28"); E("s_cbranch_scc0 SPARE")
E(f"s_lshl_b32 s{sT}, s{sW}, 6"); E(f"v_add_u32 v0, s{sT}, v255")
role_v()
def div5(): E(f"s_mul_i32 s{sR}, s{sN}, 52429"); E(f"s_lshr_b32 s{sR}, s{sR}, 18"); E(f"s_mul_i32 s{sT}, s{sR}, 5"); E(f"s_sub_u32 s{sH}, s{sN}, s{sT}")
def fbflag(): E(f"s_mul_i32 s{sT}, s{sT}, 5"); E(f"s_add_u32 s{sT}, s{sT}, s{sH}"); flag(sFl,F_FB,sT)
L("SPARE"); E(f"s_sub_u32 s{sN}, s{sI}, 24"); E(f"s_lshl_b32 s{sN}, s{sN}, 2"); E("s_branch W_A2")
L("WORKER"); EX[0]="EX1"
common_setup(); E(f"s_sub_u32 s{sX}, s{sX}, 4"); E(f"s_and_b32 s7, s{sI}, 15")
def jidx(c): E(f"s_lshr_b32 s{sN}, s{sI}, 4"); E(f"s_lshl_b32 s{sN}, s{sN}, 3"); E(f"s_add_u32 s{sN}, s{sN}, s7"); E(f"s_add_u32 s{sN}, s{sN}, {c}"); E("s_bitcmp1_b32 s7, 3")
jidx(16); E("s_cbranch_scc1 BT1")
L("WORK2")
def first(vm):
    if not ONE: return xload(vm)
    laneaddr(vXO,[(0,31,1280),(5,1,16)]); E(f"s_sub_u32 s{sT}, s{sA}, {XF_OFF}")
    for t in range(40): bload(4,ar(4*t,4),vXO,X,f"s{sT}",32*t)
    init2(True); arrive(70); gwait(70)
E(f"s_lshl_b32 s{sH}, s{sX}, 3"); E(f"s_and_b32 s{sT}, s{sI}, 7"); E(f"s_add_u32 s{sH}, s{sH}, s{sT}"); E(f"s_bfe_u32 s{sR}, s{sI}, 0x10003"); E(f"s_lshl_b32 s{sR}, s{sR}, 1")
E(f"s_lshl_b32 s{sT}, s{sX}, 4"); flag(sFl,F_QK,sT)
E(f"s_cmp_lt_u32 s{sI}, 16"); E("s_cbranch_scc0 W_VO")
loop_task(0,first); E("s_branch W_A")
L("W_VO"); E(f"s_add_u32 s{sFl}, s{sFl}, {128*(F_VO-F_QK)}"); loop_task(1,first); E("s_branch W_A")
L("EX1"); E("s_endpgm")
L("W_A"); ph(1); jidx(0); E("s_cbranch_scc1 W_AT")
L("W_A2"); E(f"s_lshl_b32 s{sH}, s{sX}, 1"); E(f"s_and_b32 s{sT}, s{sN}, 1"); E(f"s_add_u32 s{sH}, s{sH}, s{sT}"); E(f"s_lshr_b32 s{sR}, s{sN}, 1")
if os.environ.get("NOA"): E(f"s_cmp_lt_u32 s{sN}, 16"); E("s_cbranch_scc0 W_A3")
task_a(); L("W_A3"); flag(sFl,F_A,sH); drain_signal(f"s{sFl}"); ph(2)
E(f"s_cmp_lt_u32 s{sN}, 16"); E("s_cbranch_scc1 W_AT"); E(f"s_add_u32 s{sN}, s{sN}, 1"); E(f"s_and_b32 s{sT}, s{sN}, 3"); E("s_cbranch_scc1 W_A2")
E(f"s_lshl_b32 s{sN}, s{sX}, 2"); E(f"s_add_u32 s{sN}, s{sN}, s{sI}"); E(f"s_sub_u32 s{sN}, s{sN}, 28")
L("SP1"); div5(); E(f"s_add_u32 s{sFl2}, s{sR}, 4"); E(f"s_mov_b32 s{sFl}, {FLG(F_PR)}")
final(lambda:fwait(f"s{sFl}",f"s{sFl2}",0,12),0); E(f"s_lshr_b32 s{sT}, s{sR}, 2"); fbflag(); drain_signal(f"s{sFl}"); ph(8)
E(f"s_add_u32 s{sN}, s{sN}, 16"); E(f"s_cmp_lt_u32 s{sN}, {20*RT0}"); E("s_cbranch_scc1 SP1"); E("s_endpgm")
L("W_AT")
E(f"s_lshl_b32 s{sH}, s{sX}, 3"); E(f"s_lshr_b32 s{sT}, s{sI}, 2"); E(f"s_add_u32 s{sH}, s{sH}, s{sT}"); E(f"s_and_b32 s{sR}, s{sI}, 3")
E(f"s_lshr_b32 s{sT}, s{sH}, 2"); flag(sFl,F_A,sT); E(f"s_cmp_eq_u32 s{sW}, 0"); E("s_cbranch_scc0 W_AQ"); fwait(f"s{sFl}",16,0,2); acquire(); L("W_AQ"); E("s_barrier"); ph(3)
attention("","sc1"); common_setup(); flag(sFl,F_AT,sR); drain_signal(f"s{sFl}"); ph(4)
E(f"s_lshl_b32 s{sN}, s{sI}, 2"); E(f"s_add_u32 s{sN}, s{sN}, s{sX}"); E(f"s_cmp_lt_u32 s{sN}, 80"); E("s_cbranch_scc0 FIN0")
div5(); E(f"s_lshr_b32 s{sT}, s{sR}, 2"); flag(sFl,F_AT,sT); fwait(f"s{sFl}",32,0); E(f"s_mov_b32 s{sT}, s{sR}"); fbflag(); ph(5)
task_ao()
L("FIN0"); E(f"s_add_u32 s{sN}, s{sN}, {20*RT0-80}"); E(f"s_cmp_lt_u32 s{sN}, 320"); E("s_cbranch_scc0 EX2"); EX[0]="EX2"
div5(); E(f"s_lshr_b32 s{sT}, s{sR}, 2"); fbflag(); fwait(f"s{sFl}",1,0,4); flag(sFl,F_END,sH); E(f"s_add_u32 s{sFl2}, s{sR}, 4")
E(f"s_cmp_lt_u32 s{sR}, 60"); E(f"s_cselect_b32 s{sFl}, {FLG(F_PR)}, s{sFl}"); E(f"s_cselect_b32 s{sFl2}, s{sFl2}, 16")
final(lambda:(fwait(f"s{sFl}",f"s{sFl2}",0,2),ph(7))); ph(8); L("EX2"); E("s_endpgm")
emit()
```
